```python
import torch

def _softmax(x, axis=-1):
    return torch.softmax(x, dim=axis)

def _gelu(x):
    return torch.nn.functional.gelu(x, approximate='tanh')

def _silu(x):
    return torch.nn.functional.silu(x)

def _sigmoid(x):
    return torch.sigmoid(x)

def _layernorm(x, axis=-1, eps=1e-05):
    m = x.mean(dim=axis, keepdim=True)
    v = x.var(dim=axis, keepdim=True, unbiased=False)
    return (x - m) / torch.sqrt(v + eps)

def _scatter_add(tgt, idx, src, axis=0):
    return tgt.clone().index_add_(axis, idx, src)

def _segment_sum(src, seg, n):
    out = torch.zeros((n,) + src.shape[1:], dtype=src.dtype)
    return out.index_add_(0, seg, src)

def _pad(x, pw):
    flat = tuple((v for pair in reversed(pw) for v in pair))
    return torch.nn.functional.pad(x, flat)
kernel_name = 'adaLN_cond__gqa_block_cached__swiglu_ffn__decode'

def setup_inputs():

    _w = lambda a: (lambda t: t.to(torch.bfloat16) if t.is_floating_point() else t)(torch.as_tensor(a))

    def _A_setup():
        B, Sq, D = (1, 1, 1024)
        Hq, Hkv, Sk, Dh = (32, 4, 65536, 128)
        assert Hq % Hkv == 0, (Hq, Hkv)
        return {'x': _w((lambda *s: torch.randn(*s, dtype=torch.bfloat16) * 0.05)(B, Sq, D)), 'k_cache': _w((lambda *s: torch.randn(*s, dtype=torch.bfloat16) * 3.2)(B, Hkv, Sk, Dh)), 'v_cache': _w((lambda *s: torch.randn(*s, dtype=torch.bfloat16) * 0.4)(B, Hkv, Sk, Dh)), 'wq': _w((lambda *s: torch.randn(*s, dtype=torch.bfloat16) * 3.2)(D, Hq * Dh) * D ** (-0.5)), 'wo': _w((lambda *s: torch.randn(*s, dtype=torch.bfloat16) * 0.4)(Hq * Dh, D) * (Hq * Dh) ** (-0.5))}
    _A_in = _A_setup()

    def _B_setup():
        B, S, D, F = (1, 1, 1024, 3584)
        return {'x': _w((lambda *s: torch.randn(*s, dtype=torch.bfloat16) * 0.05)(B, S, D)), 'w_gate': _w((lambda *s: torch.randn(*s, dtype=torch.bfloat16) * 0.05)(D, F)), 'w_up': _w((lambda *s: torch.randn(*s, dtype=torch.bfloat16) * 0.05)(D, F)), 'w_down': _w((lambda *s: torch.randn(*s, dtype=torch.bfloat16) * 0.05)(F, D))}
    _B_in = _B_setup()
    return {'A_x': _A_in['x'], 'A_k_cache': _A_in['k_cache'], 'A_v_cache': _A_in['v_cache'], 'A_wq': _A_in['wq'], 'A_wo': _A_in['wo'], 'B_x': _B_in['x'], 'B_w_gate': _B_in['w_gate'], 'B_w_up': _B_in['w_up'], 'B_w_down': _B_in['w_down'], 'c': _w((lambda *s: torch.randn(*s, dtype=torch.bfloat16) * 0.4)(1, 1024) * 8.0), 'w_mod': _w((lambda *s: torch.randn(*s, dtype=torch.bfloat16) * 0.4)(1024, 6 * 1024) * 1024 ** (-0.5) * 8.0)}

def reference(A_x, A_k_cache, A_v_cache, A_wq, A_wo, B_x, B_w_gate, B_w_up, B_w_down, c, w_mod):

    def _A_ref(x, k_cache, v_cache, wq, wo):
        B, Sq, D = x.shape
        Hq, Dh = (32, 128)
        Hkv = k_cache.shape[1]
        rep = Hq // Hkv
        q = (lambda x, *d: x.permute(*d))((x @ wq).reshape(B, Sq, Hq, Dh), 0, 2, 1, 3)
        k = (lambda x, n, axis: torch.repeat_interleave(x, n, dim=axis))(k_cache, rep, axis=1)
        v = (lambda x, n, axis: torch.repeat_interleave(x, n, dim=axis))(v_cache, rep, axis=1)
        scores = torch.einsum('bhqd,bhkd->bhqk', q, k) * Dh ** (-0.5)
        p = _softmax(scores, axis=-1)
        o = torch.einsum('bhqk,bhkd->bhqd', p, v)
        return (lambda x, *d: x.permute(*d))(o, 0, 2, 1, 3).reshape(B, Sq, Hq * Dh) @ wo

    def _B_ref(x, w_gate, w_up, w_down):
        g = _silu(x @ w_gate)
        u = x @ w_up
        return g * u @ w_down
    x = A_x
    mod = (_silu(c) @ w_mod).reshape(c.shape[0], 6, 1, -1)
    sa, ca, ga, sb, cb, gb = (mod[:, 0].clone(), mod[:, 1].clone(), mod[:, 2].clone(), mod[:, 3].clone(), mod[:, 4].clone(), mod[:, 5].clone())
    h = _layernorm(x, axis=-1) * (1 + ca) + sa
    x = x + ga * _A_ref(h, A_k_cache, A_v_cache, A_wq, A_wo)
    h = _layernorm(x, axis=-1) * (1 + cb) + sb
    x = x + gb * _B_ref(h, B_w_gate, B_w_up, B_w_down)
    return x
```

```python
NAME='adaLN_cond__gqa_block_cached__swiglu_ffn__decode_kernel'
class Asm:
    def __init__(self):
        self.l=[]
    def __call__(self, s=''):
        for x in s.split('\n'):
            self.l.append(x)
    def text(self):
        return '\n'.join(self.l)+'\n'
def header(a, grid, block, lds, extra=''):
    a(f'; @launch grid=({grid},1,1) block=({block},1,1) lds={lds}')
    if extra: a(extra)
    a('.amdgcn_target "amdgcn-amd-amdhsa--gfx950"')
    a('.text')
    a(f'.globl {NAME}')
    a('.p2align 8')
    a(f'.type {NAME},@function')
    a(f'{NAME}:')
def footer(a, vgpr, accum, sgpr=96):
    a('.section .rodata,"a"')
    a('.p2align 6')
    a(f'.amdhsa_kernel {NAME}')
    a(f'  .amdhsa_next_free_vgpr {vgpr}')
    a(f'  .amdhsa_next_free_sgpr {sgpr}')
    a(f'  .amdhsa_accum_offset {accum}')
    a('  .amdhsa_group_segment_fixed_size 0')
    a('  .amdhsa_kernarg_size 112')
    a('  .amdhsa_user_sgpr_count 2')
    a('  .amdhsa_user_sgpr_kernarg_segment_ptr 1')
    a('  .amdhsa_system_sgpr_workgroup_id_x 1')
    a('.end_amdhsa_kernel')
def srd(a, d, b, nbytes):
    a(f's_mov_b32 s{d}, s{b}')
    a(f's_and_b32 s{d+1}, s{b+1}, 0xffff')
    a(f's_mov_b32 s{d+2}, {nbytes}')
    a(f's_mov_b32 s{d+3}, 0x20000')
```

```python
import re
TRANS=('v_exp_f32','v_log_f32','v_rcp_f32','v_rsq_f32','v_sqrt_f32','v_sin_f32','v_cos_f32')
def regs(tok):
    tok=tok.strip()
    tok=re.sub(r'^-','',tok);
    m=re.match(r'^(?:abs\(|\|)?([vsa])(\d+)\)?\|?$',tok)
    if m: return {(m.group(1),int(m.group(2)))}
    m=re.match(r'^([vsa])\[(\d+):(\d+)\]$',tok)
    if m: return {(m.group(1),i) for i in range(int(m.group(2)),int(m.group(3))+1)}
    if tok=='vcc': return {('s',106),('s',107)}
    if tok=='exec': return {('s',126),('s',127)}
    if tok=='m0': return {('s',124)}
    return set()
def split_ops(rest):
    out=[];cur='';d=0
    for ch in rest:
        if ch=='[': d+=1
        if ch==']': d-=1
        if ch==',' and d==0: out.append(cur); cur=''
        else: cur+=ch
    out.append(cur)
    res=[]
    for o in out:
        o=o.strip()
        res.append(o.split()[0] if o else '')
    return res
class I: pass
def parse(line):
    s=line.split(';')[0].strip()
    if not s or s.endswith(':') or s.startswith('.'): return None
    p=s.split(None,1); mn=p[0]; rest=p[1] if len(p)>1 else ''
    ops=split_ops(rest)
    i=I(); i.mn=mn; i.text=s; i.w=set(); i.r=set(); i.kind='other'; i.dpp=('_dpp' in mn); i.srcC=set(); i.ab=set(); i.stdata=set()
    R=[regs(o) for o in ops]
    if mn.startswith('v_mfma'):
        i.kind='mfma'; i.w=R[0]; i.ab=R[1]|R[2]; i.srcC=R[3]; i.r=i.ab|i.srcC
        i.passes=4 if '16x16x32' in mn else 8
    elif mn.startswith('v_'):
        i.kind='valu'
        if 'permlane' in mn and 'swap' in mn:
            i.w=R[0]|R[1]; i.r=R[0]|R[1]
        else:
            i.w=R[0]
            for x in R[1:]: i.r|=x
            if mn.startswith('v_fmac') or mn.startswith('v_dot2c') or mn.startswith('v_writelane') or i.dpp: i.r|=R[0]
            if mn.startswith('v_cndmask') and len(ops)==3: i.r|=regs('vcc')
        i.dppsrc=R[1] if i.dpp else set()
    elif mn.startswith('buffer_') or mn.startswith('global_'):
        i.kind='vmem'
        lds=' lds' in (' '+rest)
        if 'load' in mn and not lds:
            i.w=R[0]
            for x in R[1:]: i.r|=x
        else:
            for x in R: i.r|=x
            if ('store' in mn) and ('x4' in mn or 'x3' in mn): i.stdata=R[0]
            if 'atomic' in mn and 'sc0' in rest: i.w=R[0]
        i.lds=lds
    elif mn.startswith('ds_'):
        i.kind='ds'
        if 'read' in mn or 'permute' in mn or 'rtn' in mn or 'swizzle' in mn:
            i.w=R[0]
            for x in R[1:]: i.r|=x
        else:
            for x in R: i.r|=x
    elif mn.startswith('s_'):
        i.kind='salu'
        if mn=='s_nop': i.kind='nop'; i.n=int(ops[0],0)+1
        elif mn.startswith('s_cmp') or mn.startswith('s_cbranch') or mn in('s_branch','s_waitcnt','s_barrier','s_endpgm','s_sleep','s_setprio'): pass
        else:
            i.w=R[0] if R else set()
            for x in R[1:]: i.r|=x
    return i
def V(s): return {x for x in s if x[0] in 'va'}
def S(s): return {x for x in s if x[0]=='s'}
def need(p,c):
    n=0
    if p.kind=='valu':
        pv=V(p.w); ps=S(p.w)
        if c.kind=='valu':
            if c.dpp and pv&c.dppsrc: n=max(n,2)
            if 'permlane' in c.mn and pv&c.r: n=max(n,2)
            if c.mn.startswith(('v_readlane','v_readfirstlane')) and pv&c.r: n=max(n,1)
            if p.mn.replace('_e32','').replace('_e64','') in TRANS and pv&c.r: n=max(n,1)
            if ps&c.r: n=max(n,2)
            if ps&c.r and c.mn.startswith(('v_readlane','v_writelane')): n=max(n,4)
            if ('s',126) in ps: n=max(n,5)
        if c.kind=='mfma':
            if pv&c.r: n=max(n,2)
            if ('s',126) in ps: n=max(n,4)
        if c.kind=='vmem' and ps&c.r: n=max(n,5)
        if c.kind=='salu' and ps&c.r: n=max(n,1)
    if p.kind=='mfma':
        big={4:8,8:12}[p.passes]
        if c.kind=='mfma':
            if p.w&c.ab: n=max(n,big)
            if p.w&c.srcC and not (p.w==c.srcC and p.passes==c.passes): n=max(n,big-2)
            if p.w&c.w and not (p.w==c.srcC): n=max(n,big-2)
        elif c.kind in('valu','vmem','ds'):
            if p.w&(c.r|c.w): n=max(n,big)
            if c.kind=='valu' and p.srcC&c.w: n=max(n,{4:3,8:7}[p.passes])
    if p.kind=='salu' and ('s',124) in p.w and c.kind=='vmem' and getattr(c,'lds',False): n=max(n,1)
    if p.kind=='vmem' and p.stdata:
        if c.kind=='valu' and p.stdata&c.w: n=max(n,2)
        elif c.kind in('vmem','ds','mfma') and p.stdata&c.w: n=max(n,2)
    return n
def pad(text):
    out=[]; hists=[[]]; snaps={}
    for line in text.split('\n'):
        st=line.split(';')[0].strip()
        if st.endswith(':') and not st.startswith('.'):
            lab=st[:-1]
            for h in snaps.pop(lab,[]): hists.append(list(h))
        c=parse(line)
        if c is None:
            out.append(line); continue
        if c.kind!='nop':
            req=0
            for hist in hists:
                d=0
                for p in reversed(hist):
                    if p.kind!='nop':
                        req=max(req, need(p,c)-d)
                    d+= p.n if p.kind=='nop' else 1
                    if d>=24: break
            if req>0:
                out.append(f's_nop {req-1}'); q=I(); q.kind='nop'; q.n=req
                for hist in hists: hist.append(q)
        out.append(line)
        for hist in hists: hist.append(c)
        hists=[h[-26:] for h in hists]
        uniq=[]
        for h in hists:
            if not any(len(h)==len(u) and all(x is y for x,y in zip(h,u)) for u in uniq): uniq.append(h)
        hists=uniq
        if c.mn.startswith('s_cbranch') or c.mn=='s_branch':
            tgt=c.text.split()[1]
            snaps.setdefault(tgt,[]).extend([list(h) for h in hists])
            if c.mn=='s_branch': hists=[[]]
        if c.mn=='s_endpgm': hists=[[]]
    return '\n'.join(out)
```

```python
import sys
from asmlib import *
from hazard import pad

HDR = open('adaLN_cond__gqa_block_cached__swiglu_ffn__decode.s.ref').read().split('\n')
HDR = [l for l in HDR if l.startswith(';') and '@launch' not in l]

STR = 8448
OFF_PA, OFF_PM, OFF_PQ, OFF_PB, OFF_PD, OFF_PC, OFF_ML, OFF_ST = 0, 4096, 5632, 6144, 6656, 7168, 8192, 8320
RING = 16384
L_SCR = 131072
L_M, L_Q, L_QB, L_ML, L_MR = L_SCR, L_SCR + 12288, L_SCR + 16384, L_SCR + 18688, L_SCR + 19200
LDS_BYTES = L_SCR + 19456
L_WO, L_GU, L_DN = 8192, RING + 8192, 2 * RING + 8192
OSTR = 528
QSTR = 272
LOG2E = 0x3fb8aa3b
SCALE = 0x3db504f3
EPS = 0x3727c5ac
SPIN = 60000
DPP = 'row_mask:0xf bank_mask:0xf'

SK, SV, SWQ, SWO, SG, SU, SD, SM, SWS, SX, SC, SO, SDB = 32, 36, 40, 44, 48, 52, 56, 60, 64, 68, 72, 76, 80
def sr(x): return f's[{x}:{x+3}]'
sW, sV = 2, 3
sKVH, sOWN, sKB, sX, sRG, sSLOT, sTEAM, sSPIN = 84, 85, 86, 87, 88, 89, 90, 91
sT0, sT1, sT2, sT3 = 92, 93, 94, 95
sSEL = 96
sE = 98
sTB = 100
sV64 = 101
vL = 1
vMASK = 2
vGM, vGB = 6, 7
vW2K, vW7K = 8, 9
vKO, vV0, vV1 = 12, 13, 14
vRED = 15
vTR = 16
vXF, vGA, vSB, vCB, vGBm, vX2 = 24, 25, 26, 27, 28, 29
vT0, vT1 = 30, 31
vOW = 10
vGA4 = 11
vWM, vWQ = 64, 88
vBQ, vS, vP = 64, 80, 96
vK = 128
vWO, vWG, vWU, vWD = 128, 144, 160, 176
vO, vVF = 192, 224
vST = 127


class Gen:
    def __init__(self, stamps=False, cfg=None):
        self.a = Asm()
        self.stamps = stamps
        self.nlab = 0
        self.cfg = dict(KA=4, KB=4, KC=6, KD=4)
        if cfg: self.cfg.update(cfg)
        self.knext = 0

    def lab(self, s):
        self.nlab += 1
        return f'L_{s}_{self.nlab}'

    def stamp(self, k):
        if not self.stamps: return
        a = self.a
        a(f's_memrealtime s[{sE}:{sE+1}]')
        a('s_waitcnt lgkmcnt(0)')
        a(f'v_writelane_b32 v{vST}, s{sE}, {k}')

    def rnd(self, dst, src):
        a = self.a
        a(f'v_cvt_pk_bf16_f32 v{dst}, v{src}, v{src}')
        a(f'v_and_b32 v{dst}, 0xffff0000, v{dst}')

    def allred(self, op, regs, bits, tmps):
        a = self.a
        for b in bits:
            if b in (0, 1, 2, 3):
                mod = {0: 'quad_perm:[1,0,3,2]', 1: 'quad_perm:[2,3,0,1]', 2: 'row_ror:4', 3: 'row_ror:8'}[b]
                for r in regs:
                    a(f'{op}_dpp v{r}, v{r}, v{r} {mod} {DPP}')
            else:
                ins = 'v_permlane16_swap_b32' if b == 4 else 'v_permlane32_swap_b32'
                for r, t in zip(regs, tmps): a(f'v_mov_b32 v{t}, v{r}')
                for r, t in zip(regs, tmps): a(f'{ins} v{t}, v{r}')
                for r, t in zip(regs, tmps): a(f'{op} v{r}, v{r}, v{t}')

    def tred(self, x, y, bits=(3, 2)):
        a = self.a
        a(f'v_permlane32_swap_b32 v{x}, v{x+2}')
        a(f'v_permlane32_swap_b32 v{x+1}, v{x+3}')
        a(f'v_add_f32 v{x}, v{x}, v{x+2}')
        a(f'v_add_f32 v{x+1}, v{x+1}, v{x+3}')
        a(f'v_permlane16_swap_b32 v{x}, v{x+1}')
        a(f'v_add_f32 v{y}, v{x}, v{x+1}')
        self.allred('v_add_f32', [y], bits, [])

    def poll(self, loads, chk, extra=None, nextra=0, pre=None):
        a = self.a
        lr, lo, lc = self.lab('retry'), self.lab('ok'), self.lab('chk')
        a(f's_mov_b32 s{sSPIN}, 0')
        if extra:
            if pre: pre()
            for l in loads: a(l)
            extra()
            a(f's_waitcnt vmcnt({nextra})')
            a(f's_branch {lc}')
        a(f'{lr}:')
        if pre: pre()
        for l in loads: a(l)
        a('s_waitcnt vmcnt(0)')
        a(f'{lc}:')
        c = list(chk)
        if len(c) == 1:
            a(f'v_cmp_eq_u32 vcc, -1, v{c[0]}')
        else:
            if len(c) == 2:
                a(f'v_max_u32 v{vT0}, v{c[0]}, v{c[1]}'); c = []
            else:
                a(f'v_max3_u32 v{vT0}, v{c[0]}, v{c[1]}, v{c[2]}'); c = c[3:]
            while len(c) >= 2:
                a(f'v_max3_u32 v{vT0}, v{vT0}, v{c[0]}, v{c[1]}'); c = c[2:]
            if c: a(f'v_max_u32 v{vT0}, v{vT0}, v{c[0]}')
            a(f'v_cmp_eq_u32 vcc, -1, v{vT0}')
        a(f's_cbranch_vccz {lo}')
        a(f's_add_u32 s{sSPIN}, s{sSPIN}, 1')
        a(f's_cmp_gt_u32 s{sSPIN}, {SPIN}')
        a('s_cbranch_scc1 L_end')
        a('s_sleep 1')
        a(f's_branch {lr}')
        a(f'{lo}:')

    def afrag(self, dst, xdup, n):
        for d in range(4):
            self.a(f'v_and_b32_dpp v{dst+d}, v{xdup}, v{vMASK+d} quad_perm:[{n},{n},{n},{n}] {DPP}')

    def gemv(self, xdup, nin, mats, abase):
        a = self.a
        for n in range(nin):
            self.afrag(abase + 4 * n, xdup, n)
        for n in range(nin):
            for wb, acc in mats:
                c = '0' if n == 0 else f'v[{acc}:{acc+3}]'
                a(f'v_mfma_f32_16x16x32_bf16 v[{acc}:{acc+3}], v[{abase+4*n}:{abase+4*n+3}], v[{wb+4*n}:{wb+4*n+3}], {c}')

    def out_write(self, accs, lbase):
        a = self.a
        a('s_mov_b32 exec_hi, 0')
        for b, acc in enumerate(accs):
            off = lbase + 4096 * b
            if off < 65536:
                a(f'ds_write_b128 v{vOW}, v[{acc}:{acc+3}] offset:{off}')
            else:
                a(f'v_add_u32 v{vT1}, {off}, v{vOW}')
                a(f'ds_write_b128 v{vT1}, v[{acc}:{acc+3}]')
        a('s_mov_b64 exec, -1')
        a('s_waitcnt lgkmcnt(0)')

    def out_reduce(self, nblk, lbase, slot, t=32):
        a = self.a
        ls = self.lab('nored')
        a(f's_cmp_ge_u32 s{sV}, {nblk}')
        a(f's_cbranch_scc1 {ls}')
        a(f's_lshl_b32 s{sT0}, s{sV}, 12')
        a(f's_add_u32 s{sT0}, s{sT0}, {lbase}')
        a(f'v_add_u32 v{vT1}, s{sT0}, v{vRED}')
        for k in range(4):
            a(f'ds_read2st64_b64 v[{t+4*k}:{t+4*k+3}], v{vT1} offset0:{2*k} offset1:{2*k+1}')
        a(f's_lshl_b32 s{sT0}, s{sV}, 9')
        a(f's_add_u32 s{sT0}, s{sT0}, s{sOWN}')
        a(f's_add_u32 s{sT0}, s{sT0}, {slot}')
        self.sum8pairs(t)
        a(f'buffer_store_dwordx2 v[{t}:{t+1}], v{vRED}, {sr(SWS)}, s{sT0} offen sc1')
        a(f'{ls}:')

    def sum8pairs(self, t):
        a = self.a
        a('s_waitcnt lgkmcnt(2)')
        a(f'v_pk_add_f32 v[{t}:{t+1}], v[{t}:{t+1}], v[{t+2}:{t+3}]')
        a(f'v_pk_add_f32 v[{t+4}:{t+5}], v[{t+4}:{t+5}], v[{t+6}:{t+7}]')
        a('s_waitcnt lgkmcnt(0)')
        a(f'v_pk_add_f32 v[{t+8}:{t+9}], v[{t+8}:{t+9}], v[{t+10}:{t+11}]')
        a(f'v_pk_add_f32 v[{t+12}:{t+13}], v[{t+12}:{t+13}], v[{t+14}:{t+15}]')
        a(f'v_pk_add_f32 v[{t}:{t+1}], v[{t}:{t+1}], v[{t+4}:{t+5}]')
        a(f'v_pk_add_f32 v[{t+8}:{t+9}], v[{t+8}:{t+9}], v[{t+12}:{t+13}]')
        a(f'v_pk_add_f32 v[{t}:{t+1}], v[{t}:{t+1}], v[{t+8}:{t+9}]')
        a(f'v_min_u32 v{t}, -2, v{t}')
        a(f'v_min_u32 v{t+1}, -2, v{t+1}')

    def silu(self, dst, src, t):
        a = self.a
        a(f's_mov_b32 s{sT2}, 0xbfb8aa3b')
        a(f'v_max_f32 v{t+2}, 0xc2b00000, v{src}')
        a(f'v_min_f32 v{t+2}, 0x42c80000, v{t+2}')
        a(f'v_mul_f32 v{t}, s{sT2}, v{t+2}')
        a(f'v_fma_f32 v{t+1}, v{t+2}, s{sT2}, -v{t}')
        a(f'v_fmac_f32 v{t+1}, 0xb2a57060, v{t+2}')
        a(f'v_exp_f32 v{t}, v{t}')
        a(f'v_mul_f32 v{t+1}, 0x3f317218, v{t+1}')
        a(f'v_fmac_f32 v{t}, v{t}, v{t+1}')
        a(f'v_add_f32 v{t}, 1.0, v{t}')
        a(f'v_rcp_f32 v{t+1}, v{t}')
        a(f'v_fma_f32 v{t+2}, -v{t}, v{t+1}, 1.0')
        a(f'v_fmac_f32 v{t+1}, v{t+2}, v{t+1}')
        a(f'v_mul_f32 v{t+2}, v{src}, v{t+1}')
        a(f'v_fma_f32 v{t+3}, -v{t}, v{t+2}, v{src}')
        a(f'v_fmac_f32 v{t+2}, v{t+3}, v{t+1}')
        a(f'v_fma_f32 v{t+3}, -v{t}, v{t+2}, v{src}')
        a(f'v_fma_f32 v{dst}, v{t+3}, v{t+1}, v{t+2}')

    def ln_apply(self, dst, x, mean, var, c1, sh, t):
        a = self.a
        self.rnd(mean, mean)
        self.rnd(var, var)
        a(f'v_add_f32 v{var}, {EPS}, v{var}')
        self.rnd(var, var)
        a(f'v_sqrt_f32 v{var}, v{var}')
        self.rnd(var, var)
        a(f'v_rcp_f32 v{var}, v{var}')
        a(f'v_sub_f32 v{t}, v{x}, v{mean}')
        self.rnd(t, t)
        a(f'v_mul_f32 v{t}, v{t}, v{var}')
        self.rnd(t, t)
        a(f'v_mul_f32 v{t}, v{t}, v{c1}')
        self.rnd(t, t)
        a(f'v_add_f32 v{t}, v{t}, v{sh}')
        a(f'v_cvt_pk_bf16_f32 v{dst}, v{t}, v{t}')

    def kloads(self, n):
        a = self.a
        for _ in range(n):
            j = self.knext; self.knext += 1
            t, u, hf = j // 8, (j % 8) // 2, j % 2
            if j % 4 == 0:
                a(f's_add_u32 s{sT3}, s{sKB}, {t*512*8192 + (u//2)*4096}')
            elif _ == 0:
                a(f's_add_u32 s{sT3}, s{sKB}, {t*512*8192 + (u//2)*4096}')
            r = vK + 4 * j
            a(f'buffer_load_dwordx4 v[{r}:{r+3}], v{vKO}, {sr(SK)}, s{sT3} offen offset:{(u%2)*2048+hf*128} nt')

    def vloads(self, t):
        a = self.a
        for e in range(8):
            if e % 4 == 0:
                a(f's_lshl_b32 s{sT2}, s{sV}, 14')
                a(f's_add_u32 m0, s{sT2}, {(t%2)*8192 + (e//4)*4096}')
                a(f's_add_u32 s{sT3}, s{sKB}, {t*512*8192 + (e//4)*4096}')
            vo = vV0 if e % 2 == 0 else vV1
            a(f'buffer_load_dwordx4 v{vo}, {sr(SV)}, s{sT3} offen offset:{(e%4)*1024} nt lds')

    def wloads(self, srd_, voff, sbase, stride, dst, n=4):
        a = self.a
        for k in range(n):
            if k == 0:
                so = sbase
            else:
                a(f's_add_u32 s{sT3}, s{sbase}, {4*k*stride}'); so = sT3
            a(f'buffer_load_dwordx4 v[{dst+4*k}:{dst+4*k+3}], v{voff}, {sr(srd_)}, s{so} offen nt')

    def build(self):
        a = self.a
        cfg = self.cfg
        for l in HDR: a(l)
        header(a, 256, 512, LDS_BYTES, '; @stamps 2048 16' if self.stamps else '')
        a('s_cmp_ge_u32 s2, 256')
        a('s_cbranch_scc1 L_end')
        a('s_load_dwordx16 s[4:19], s[0:1], 0')
        a('s_load_dwordx8 s[20:27], s[0:1], 64')
        a('s_load_dwordx4 s[28:31], s[0:1], 96')
        a(f'v_lshrrev_b32 v{vT0}, 6, v0')
        a(f'v_and_b32 v{vL}, 63, v0')
        a(f'v_readfirstlane_b32 s{sV}, v{vT0}')
        if self.stamps: a(f'v_mov_b32 v{vST}, 0')
        a(f'v_lshrrev_b32 v32, 4, v{vL}')
        a(f'v_and_b32 v33, 15, v{vL}')
        a(f'v_and_b32 v34, 3, v{vL}')
        a(f'v_lshrrev_b32 v35, 2, v{vL}')
        a(f'v_lshlrev_b32 v36, 4, v33')
        a(f'v_mul_u32_u24 v37, 12288, v32')
        a(f'v_add_u32 v37, v37, v36')
        a(f'v_lshl_add_u32 v38, v32, 13, v36')
        a(f'v_and_b32 v39, 1, v{vL}')
        a(f'v_lshl_add_u32 v39, v39, 2, v32')
        a(f'v_lshlrev_b32 v39, 1, v39')
        a(f'v_lshl_add_u32 v40, v34, 2, v32')
        a(f'v_lshlrev_b32 v40, 1, v40')
        a(f'v_lshlrev_b32 v41, 5, v{vL}')
        a(f's_mul_i32 s{sOWN}, s2, {STR}')
        a(f's_and_b32 s{sKVH}, s2, 3')
        a(f's_and_b32 s{sX}, s2, 7')
        a(f's_bfe_u32 s{sRG}, s2, 0x30003')
        a(f's_lshr_b32 s{sSLOT}, s2, 6')
        a(f's_lshl_b32 s{sTEAM}, s{sSLOT}, 3')
        a(f's_add_u32 s{sTEAM}, s{sTEAM}, s{sX}')
        a(f's_lshl_b32 s{sV64}, s{sV}, 6')
        a('s_waitcnt lgkmcnt(0)')
        self.stamp(0)
        srd(a, SC, 22, 2048); srd(a, SM, 24, 12 << 20); srd(a, SWS, 30, 256 << 20); srd(a, SDB, 28, 256)
        srd(a, SX, 4, 2048); srd(a, SWQ, 10, 8 << 20); srd(a, SK, 6, 64 << 20); srd(a, SV, 8, 64 << 20)
        srd(a, SWO, 12, 8 << 20); srd(a, SG, 16, 7 << 20); srd(a, SU, 18, 7 << 20); srd(a, SD, 20, 7 << 20)
        srd(a, SO, 26, 2048)
        a(f's_cmp_lg_u32 s{sV}, 7')
        a('s_cbranch_scc1 L_noclear')
        a('s_setprio 3')
        for k in range(4): a(f'v_mov_b32 v{44+k}, -1')
        a(f'v_lshlrev_b32 v48, 4, v{vL}')
        for k in range(8):
            if k == 4: a(f's_add_u32 s{sT0}, s{sOWN}, 4096')
            so = sOWN if k < 4 else sT0
            a(f'buffer_store_dwordx4 v[44:47], v48, {sr(SWS)}, s{so} offen offset:{(k%4)*1024} sc1')
        a(f's_add_u32 s{sT0}, s{sOWN}, 8192')
        a('s_mov_b64 exec, 0xffff')
        a(f'buffer_store_dwordx4 v[44:47], v48, {sr(SWS)}, s{sT0} offen sc1')
        a('s_mov_b64 exec, 1')
        a(f's_and_b32 s{sT0}, s2, 1')
        a(f's_lshl_b32 s{sT0}, s{sT0}, 7')
        a('v_mov_b32 v49, 1')
        a('s_waitcnt vmcnt(0)')
        a(f'buffer_atomic_add v49, v48, {sr(SDB)}, s{sT0} offen sc1')
        a('s_mov_b64 exec, -1')
        a('s_setprio 0')
        a('L_noclear:')
        a(f's_lshr_b32 s{sT0}, s2, 4')
        a(f's_lshl_b32 s{sT0}, s{sT0}, 6')
        a(f's_lshl_b32 s{sT1}, s{sV}, 3')
        a(f's_add_u32 s{sT0}, s{sT0}, s{sT1}')
        a(f's_lshl_b32 s{sT1}, s{sT0}, 1')
        a(f'buffer_load_ushort v50, v39, {sr(SC)}, s{sT1} offen')
        a(f's_mul_i32 s{sT0}, s{sT0}, 12288')
        a(f's_and_b32 s{sT1}, s2, 15')
        a(f's_lshl_b32 s{sT2}, s{sT1}, 8')
        a(f's_add_u32 s{sT2}, s{sT2}, s{sT0}')
        a(f'buffer_load_dwordx4 v[{vWM}:{vWM+3}], v37, {sr(SM)}, s{sT2} offen nt')
        a(f's_add_u32 s{sT2}, s{sT2}, {4*12288}')
        a(f'buffer_load_dwordx4 v[{vWM+4}:{vWM+7}], v37, {sr(SM)}, s{sT2} offen nt')
        a(f's_lshl_b32 s{sT2}, s{sT1}, 9')
        a(f's_add_u32 s{sT2}, s{sT2}, s{sT0}')
        a(f's_add_u32 s{sT2}, s{sT2}, 4096')
        a(f'buffer_load_dwordx4 v[{vWM+8}:{vWM+11}], v37, {sr(SM)}, s{sT2} offen nt')
        a(f'buffer_load_dwordx4 v[{vWM+16}:{vWM+19}], v37, {sr(SM)}, s{sT2} offen offset:256 nt')
        a(f's_add_u32 s{sT2}, s{sT2}, {4*12288}')
        a(f'buffer_load_dwordx4 v[{vWM+12}:{vWM+15}], v37, {sr(SM)}, s{sT2} offen nt')
        a(f'buffer_load_dwordx4 v[{vWM+20}:{vWM+23}], v37, {sr(SM)}, s{sT2} offen offset:256 nt')
        a(f'buffer_load_dwordx4 v[52:55], v41, {sr(SX)}, 0 offen')
        a(f'buffer_load_dwordx4 v[56:59], v41, {sr(SX)}, 0 offen offset:16')
        a(f's_lshl_b32 s{sT0}, s{sX}, 8')
        a(f's_lshl_b32 s{sT1}, s{sV}, 5')
        a(f's_add_u32 s{sT0}, s{sT0}, s{sT1}')
        a(f'buffer_load_ushort v51, v40, {sr(SX)}, s{sT0} offen')
        a(f's_lshl_b32 s{sT0}, s{sRG}, 8')
        a(f's_add_u32 s{sT0}, s{sT0}, s{sT1}')
        a(f'buffer_load_ushort v{vXF}, v40, {sr(SX)}, s{sT0} offen')
        a(f's_lshl_b32 s{sT0}, s{sX}, 7')
        a(f's_lshl_b32 s{sT1}, s{sV}, 4')
        a(f's_add_u32 s{sT0}, s{sT0}, s{sT1}')
        a(f's_lshl_b32 s{sT0}, s{sT0}, 13')
        a(f's_lshr_b32 s{sT1}, s2, 3')
        a(f's_lshl_b32 s{sT1}, s{sT1}, 8')
        a(f's_add_u32 s{sT0}, s{sT0}, s{sT1}')
        self.wloads(SWQ, 38, sT0, 8192, vWQ)
        a(f's_lshr_b32 s{sT0}, s2, 2')
        a(f's_lshl_b32 s{sT0}, s{sT0}, 3')
        a(f's_add_u32 s{sT0}, s{sT0}, s{sV}')
        a(f's_lshl_b32 s{sT0}, s{sT0}, 13')
        a(f's_lshl_b32 s{sKB}, s{sKVH}, 24')
        a(f's_add_u32 s{sKB}, s{sKB}, s{sT0}')
        a(f'v_and_b32 v42, 7, v{vL}')
        a(f'v_lshlrev_b32 v{vKO}, 8, v42')
        a(f'v_lshl_add_u32 v{vKO}, v32, 4, v{vKO}')
        a(f'v_bfe_u32 v43, v{vL}, 3, 1')
        a(f'v_lshl_add_u32 v{vKO}, v43, 6, v{vKO}')
        self.kloads(cfg['KA'])
        a(f'v_lshrrev_b32 v{vT0}, 1, v33')
        a(f'v_and_b32 v{vT1}, 1, v33')
        a(f'v_lshlrev_b32 v{vT1}, 4, v{vT1}')
        a(f'v_mov_b32 v60, 0xffff')
        a(f'v_lshlrev_b32 v{vT1}, v{vT1}, v60')
        for d in range(4):
            a(f'v_cmp_eq_u32 vcc, {d}, v{vT0}')
            a(f'v_cndmask_b32 v{vMASK+d}, 0, v{vT1}, vcc')
        a(f'v_lshlrev_b32 v60, 4, v34')
        a(f's_mov_b32 s{sT0}, {16*STR}')
        a(f'v_mad_u32_u24 v{vGM}, v35, s{sT0}, v60')
        a(f's_mov_b32 s{sT0}, {4*STR}')
        a(f'v_mad_u32_u24 v{vGA4}, v35, s{sT0}, v60')
        a(f'v_and_b32 v61, 7, v35')
        a(f'v_lshrrev_b32 v62, 3, v35')
        a(f'v_lshl_add_u32 v61, v62, 6, v61')
        a(f's_mov_b32 s{sT0}, {STR}')
        a(f'v_mad_u32_u24 v{vGB}, v61, s{sT0}, v60')
        a(f'v_lshl_add_u32 v{vW2K}, v32, 11, v36')
        a(f'v_mul_u32_u24 v{vW7K}, 7168, v32')
        a(f'v_add_u32 v{vW7K}, v{vW7K}, v36')
        a(f'v_lshlrev_b32 v{vRED}, 3, v{vL}')
        a(f's_lshl_b32 s{sT0}, s{sV}, 9')
        a(f'v_lshlrev_b32 v{vOW}, 5, v33')
        a(f'v_lshl_add_u32 v{vOW}, v32, 4, v{vOW}')
        a(f'v_add_u32 v{vOW}, s{sT0}, v{vOW}')
        for par, reg in ((0, vV0), (1, vV1)):
            a(f'v_lshlrev_b32 v61, 1, v32')
            if par: a(f'v_add_u32 v61, 8, v61')
            a(f'v_xor_b32 v61, v61, v33')
            a(f'v_lshlrev_b32 v61, 4, v61')
            a(f'v_lshl_add_u32 v{reg}, v32, 8, v61')
        a(f'v_and_b32 v61, 3, v35')
        a(f'v_and_b32 v62, 1, v32')
        a(f'v_lshl_add_u32 v61, v62, 2, v61')
        a(f'v_lshrrev_b32 v62, 1, v32')
        a(f'v_lshl_add_u32 v62, v62, 4, v61')
        a(f'v_lshlrev_b32 v62, 8, v62')
        a(f'v_lshl_add_u32 v62, v34, 3, v62')
        a(f's_lshl_b32 s{sT0}, s{sV}, 14')
        a(f'v_add_u32 v62, s{sT0}, v62')
        for d in range(8):
            a(f'v_xor_b32 v63, {d}, v61')
            a(f'v_lshl_add_u32 v{vTR+d}, v63, 5, v62')
        a(f's_mov_b32 s{sSEL}, 0x00ff00ff')
        a(f's_mov_b32 s{sSEL+1}, 0xff00ff00')
        a(f's_lshl_b32 s{sT0}, s{sSLOT}, 6')
        a(f's_add_u32 s{sT0}, s{sT0}, s{sX}')
        a(f's_mul_i32 s{sTB}, s{sT0}, {STR}')
        nafter = 6 + 4 + 4 + cfg['KA']
        a(f's_waitcnt vmcnt({nafter})')
        a('v_lshlrev_b32 v50, 16, v50')
        self.silu(50, 50, 60)
        a('v_cvt_pk_bf16_f32 v50, v50, v50')
        a(f's_waitcnt vmcnt({4 + 4 + cfg["KA"]})')
        self.stamp(1)
        self.gemv(50, 2, [(vWM, 104), (vWM + 8, 108), (vWM + 16, 112)], 116)
        a(f's_waitcnt vmcnt({4 + cfg["KA"]})')
        for k in range(8):
            a(f'v_lshlrev_b32 v{32+2*k}, 16, v{52+k}')
            a(f'v_and_b32 v{33+2*k}, 0xffff0000, v{52+k}')
        self.out_write([104, 108, 112], L_M)
        a('v_add_f32 v60, v32, v33')
        for k in range(2, 16): a(f'v_add_f32 v60, v60, v{32+k}')
        self.allred('v_add_f32', [60], (0, 1, 3, 2, 4, 5), [61])
        a(f'v_mul_f32 v60, 0x3a800000, v60')
        for k in range(16): a(f'v_sub_f32 v{32+k}, v{32+k}, v60')
        a('v_mul_f32 v62, v32, v32')
        for k in range(1, 16): a(f'v_fmac_f32 v62, v{32+k}, v{32+k}')
        self.allred('v_add_f32', [62], (0, 1, 3, 2, 4, 5), [61])
        a(f'v_mul_f32 v62, 0x3a800000, v62')
        a('v_lshlrev_b32 v51, 16, v51')
        a(f'v_lshlrev_b32 v{vXF}, 16, v{vXF}')
        a(f's_cmp_lg_u32 s{sV}, 7')
        a('s_cbranch_scc1 L_nocnt')
        a(f's_mov_b32 s{sSPIN}, 0')
        a(f'v_and_b32 v48, 1, v{vL}')
        a('v_lshlrev_b32 v48, 7, v48')
        a('L_cnt:')
        a(f'buffer_load_dword v49, v48, {sr(SDB)}, 0 offen sc1')
        a('s_waitcnt vmcnt(0)')
        a('v_cmp_gt_u32 vcc, 0x80, v49')
        a('s_cbranch_vccz L_nocnt')
        a(f's_add_u32 s{sSPIN}, s{sSPIN}, 1')
        a(f's_cmp_gt_u32 s{sSPIN}, {SPIN}')
        a('s_cbranch_scc1 L_end')
        a('s_sleep 2')
        a('s_branch L_cnt')
        a('L_nocnt:')
        a('s_barrier')
        self.out_reduce(3, L_M, OFF_PM)
        self.stamp(2)
        self.kloads(cfg['KB'])
        a(f's_mul_i32 s{sT0}, s{sX}, {STR}')
        a(f's_add_u32 s{sT0}, s{sT0}, s{sV64}')
        a(f's_add_u32 s{sT0}, s{sT0}, {OFF_PM}')
        a(f's_add_u32 s{sT1}, s{sT0}, {8*STR}')
        self.poll([f'buffer_load_dwordx4 v[32:35], v{vGM}, {sr(SWS)}, s{sT0} offen sc1',
                   f'buffer_load_dwordx4 v[36:39], v{vGM}, {sr(SWS)}, s{sT1} offen sc1'],
                  range(32, 40), extra=lambda: self.kloads(cfg['KC']), nextra=cfg['KC'])
        self.stamp(3)
        self.tred(32, 40)
        self.tred(36, 41)
        self.rnd(40, 40)
        self.rnd(41, 41)
        a('v_add_f32 v41, 1.0, v41')
        self.rnd(41, 41)
        self.ln_apply(42, 51, 60, 62, 41, 40, 43)
        self.gemv(42, 4, [(vWQ, 104)], 108)
        self.out_write([104], L_Q)
        a('s_barrier')
        self.out_reduce(1, L_Q, OFF_PQ)
        self.stamp(4)
        self.kloads(cfg['KD'])
        a(f'v_lshrrev_b32 v60, 5, v{vL}')
        a(f'v_and_b32 v61, 31, v{vL}')
        a(f'v_lshlrev_b32 v62, 4, v61')
        a(f's_mov_b32 s{sT0}, {STR}')
        a(f'v_mad_u32_u24 v63, v60, s{sT0}, v62')
        a(f'v_lshlrev_b32 v61, 3, v61')
        a(f'v_lshl_add_u32 v61, v60, 2, v61')
        a(f's_mul_i32 s{sT0}, s{sV}, {QSTR}')
        a(f's_add_u32 s{sT0}, s{sT0}, {L_QB}')
        a(f'v_add_u32 v61, s{sT0}, v61')
        a(f's_lshl_b32 s{sT0}, s{sKVH}, 3')
        a(f's_add_u32 s{sT0}, s{sT0}, s{sV}')
        a(f's_mul_i32 s{sT0}, s{sT0}, {8*STR}')
        a(f's_add_u32 s{sT0}, s{sT0}, {OFF_PQ}')
        a(f's_lshr_b32 s{sT1}, s{sRG}, 1')
        a(f's_mul_i32 s{sT1}, s{sT1}, {STR}')
        a(f's_and_b32 s{sT2}, s{sRG}, 1')
        a(f's_lshl_b32 s{sT2}, s{sT2}, 9')
        a(f's_add_u32 s{sT1}, s{sT1}, s{sT2}')
        a(f's_add_u32 s{sT1}, s{sT1}, s{sV64}')
        a(f's_add_u32 s{sT1}, s{sT1}, {OFF_PM + 512}')
        loads = []
        for n in range(4):
            loads.append(f's_add_u32 s{sT2}, s{sT0}, {2*n*STR}')
            loads.append(f'buffer_load_dwordx4 v[{32+4*n}:{35+4*n}], v63, {sr(SWS)}, s{sT2} offen sc1')
        for t in range(4):
            loads.append(f's_add_u32 s{sT2}, s{sT1}, {4*t*STR}')
            loads.append(f'buffer_load_dwordx4 v[{104+4*t}:{107+4*t}], v{vGM}, {sr(SWS)}, s{sT2} offen sc1')
        krest = 32 - self.knext
        self.poll(loads, list(range(32, 48)) + list(range(104, 120)),
                  extra=lambda: self.kloads(krest), nextra=krest)
        self.stamp(5)
        for k in range(4):
            a(f'v_add_f32 v{32+k}, v{32+k}, v{36+k}')
            a(f'v_add_f32 v{40+k}, v{40+k}, v{44+k}')
        for k in range(4): a(f'v_add_f32 v{32+k}, v{32+k}, v{40+k}')
        a('v_permlane32_swap_b32 v32, v34')
        a('v_permlane32_swap_b32 v33, v35')
        a('v_add_f32 v32, v32, v34')
        a('v_add_f32 v33, v33, v35')
        a('v_cvt_pk_bf16_f32 v32, v32, v33')
        a('ds_write_b32 v61, v32')
        for t, r in enumerate((vGA, vSB, vCB, vGBm)):
            self.tred(104 + 4 * t, r)
            self.rnd(r, r)
        a(f'v_add_f32 v{vCB}, 1.0, v{vCB}')
        self.rnd(vCB, vCB)
        a(f'v_and_b32 v60, 7, v{vL}')
        a(f'v_mul_u32_u24 v60, {QSTR}, v60')
        a(f'v_lshrrev_b32 v62, 4, v{vL}')
        a(f'v_lshl_add_u32 v60, v62, 4, v60')
        a(f'v_add_u32 v60, {L_QB}, v60')
        a(f'v_bfe_u32 v62, v{vL}, 3, 1')
        a(f'v_lshl_add_u32 v61, v62, 6, v60')
        a(f'v_xor_b32 v62, 1, v62')
        a(f'v_lshl_add_u32 v60, v62, 6, v60')
        a('s_waitcnt lgkmcnt(0)')
        a('s_barrier')
        for ty, reg in ((0, 61), (1, 60)):
            for hf in range(2):
                b = vBQ + 8 * ty + 4 * hf
                a(f'ds_read_b128 v[{b}:{b+3}], v{reg} offset:{128*hf}')
        self.vloads(0)
        a('s_waitcnt lgkmcnt(0)')
        for t in range(4):
            a(f's_waitcnt vmcnt({8 + 8*(3-t)})')
            for hf in range(2):
                for u in range(4):
                    kr = vK + 32 * t + 8 * u + 4 * hf
                    b = vBQ + 8 * (u & 1) + 4 * hf
                    d = 32 + 16 * (t & 1) + 4 * u
                    c = '0' if hf == 0 else f'v[{d}:{d+3}]'
                    a(f'v_mfma_f32_16x16x32_bf16 v[{d}:{d+3}], v[{kr}:{kr+3}], v[{b}:{b+3}], {c}')
            if t > 0: self.sfix(t - 1)
        self.sfix(3)
        self.stamp(6)
        S = list(range(vS, vS + 16))
        a(f'v_max3_f32 v60, v{S[0]}, v{S[1]}, v{S[2]}')
        for k in range(3, 15, 2): a(f'v_max3_f32 v60, v60, v{S[k]}, v{S[k+1]}')
        a(f'v_max_f32 v60, v60, v{S[15]}')
        self.allred('v_max_f32', [60], (3, 4, 5), [61])
        for r in S: a(f'v_sub_f32 v{r}, v{r}, v60')
        for r in S: a(f'v_mul_f32 v{r}, {LOG2E}, v{r}')
        for r in S: a(f'v_exp_f32 v{r}, v{r}')
        a(f'v_add_f32 v61, v{S[0]}, v{S[1]}')
        for r in S[2:]: a(f'v_add_f32 v61, v61, v{r}')
        self.allred('v_add_f32', [61], (3, 4, 5), [62])
        a(f's_add_u32 s{sT0}, s{sV64}, {L_ML}')
        a(f'v_add_u32 v62, s{sT0}, v{vRED}')
        a('s_mov_b64 exec, 0xff')
        a('ds_write_b64 v62, v[60:61]')
        a('s_mov_b64 exec, -1')
        a('s_waitcnt lgkmcnt(0)')
        a('s_barrier')
        a(f's_cmp_lg_u32 s{sV}, 0')
        a('s_cbranch_scc1 L_ml_other')
        a('s_setprio 3')
        a(f'v_add_u32 v62, {L_ML}, v{vRED}')
        a('ds_read_b64 v[32:33], v62')
        a(f'v_lshrrev_b32 v36, 3, v{vL}')
        a(f'v_and_b32 v37, 7, v{vL}')
        a(f'v_lshlrev_b32 v37, 3, v37')
        a(f's_mov_b32 s{sT0}, {4*STR}')
        a(f'v_mad_u32_u24 v36, v36, s{sT0}, v37')
        a('s_waitcnt lgkmcnt(0)')
        a('v_mov_b32 v34, v32')
        self.allred('v_max_f32', [34], (3, 4, 5), [35])
        a('v_sub_f32 v32, v32, v34')
        a(f'v_mul_f32 v32, {LOG2E}, v32')
        a('v_exp_f32 v32, v32')
        a('v_mul_f32 v35, v33, v32')
        self.allred('v_add_f32', [35], (3, 4, 5), [33])
        a('v_min_u32 v34, -2, v34')
        a('v_min_u32 v35, -2, v35')
        a(f's_add_u32 s{sT0}, s{sOWN}, {OFF_ML}')
        a('s_mov_b64 exec, 0xff')
        a(f'buffer_store_dwordx2 v[34:35], v{vRED}, {sr(SWS)}, s{sT0} offen sc1')
        a('s_mov_b64 exec, -1')
        a(f's_mul_i32 s{sT0}, s{sKVH}, {STR}')
        a(f's_add_u32 s{sT0}, s{sT0}, {OFF_ML}')
        loads = []
        for n in range(8):
            loads.append(f's_add_u32 s{sT1}, s{sT0}, {32*n*STR}')
            loads.append(f'buffer_load_dwordx2 v[{40+2*n}:{41+2*n}], v36, {sr(SWS)}, s{sT1} offen sc1')
        self.poll(loads, range(40, 56))
        a('v_max3_f32 v32, v40, v42, v44')
        a('v_max3_f32 v32, v32, v46, v48')
        a('v_max3_f32 v32, v32, v50, v52')
        a('v_max_f32 v32, v32, v54')
        self.allred('v_max_f32', [32], (3, 4, 5), [33])
        for n in range(8): a(f'v_sub_f32 v{40+2*n}, v{40+2*n}, v32')
        for n in range(8): a(f'v_mul_f32 v{40+2*n}, {LOG2E}, v{40+2*n}')
        for n in range(8): a(f'v_exp_f32 v{40+2*n}, v{40+2*n}')
        a('v_mul_f32 v33, v40, v41')
        for n in range(1, 8): a(f'v_fmac_f32 v33, v{40+2*n}, v{41+2*n}')
        self.allred('v_add_f32', [33], (3, 4, 5), [34])
        a('v_rcp_f32 v33, v33')
        a(f'v_add_u32 v62, {L_MR}, v{vRED}')
        a('s_mov_b64 exec, 0xff')
        a('ds_write_b64 v62, v[32:33]')
        a('s_mov_b64 exec, -1')
        a('s_waitcnt lgkmcnt(0)')
        a('s_setprio 0')
        a('s_barrier')
        self.vloads(1)
        a('s_branch L_ml_join')
        a('L_ml_other:')
        self.vloads(1)
        a('s_barrier')
        a('L_ml_join:')
        self.stamp(7)
        a(f'v_and_b32 v62, 7, v{vL}')
        a(f'v_lshlrev_b32 v62, 3, v62')
        a(f'v_add_u32 v62, {L_MR}, v62')
        a('ds_read_b64 v[32:33], v62')
        a('s_waitcnt lgkmcnt(0)')
        a('v_sub_f32 v32, v60, v32')
        a(f'v_mul_f32 v32, {LOG2E}, v32')
        a('v_exp_f32 v32, v32')
        a('v_mul_f32 v32, v32, v33')
        for r in S: a(f'v_mul_f32 v{r}, v{r}, v32')
        for t in range(4):
            a(f'v_cvt_pk_bf16_f32 v{vP+4*t}, v{vS+4*t}, v{vS+4*t+1}')
            a(f'v_cvt_pk_bf16_f32 v{vP+4*t+1}, v{vS+4*t+2}, v{vS+4*t+3}')
        for t in range(4):
            a(f'v_mov_b32_dpp v{vP+4*t+2}, v{vP+4*t} row_ror:8 {DPP}')
            a(f'v_mov_b32_dpp v{vP+4*t+3}, v{vP+4*t+1} row_ror:8 {DPP}')
        def tail_weights():
            a(f's_lshl_b32 s{sT0}, s{sKVH}, 3')
            a(f's_lshr_b32 s{sT1}, s{sX}, 2')
            a(f's_lshl_b32 s{sT1}, s{sT1}, 2')
            a(f's_add_u32 s{sT0}, s{sT0}, s{sT1}')
            a(f's_add_u32 s{sT0}, s{sT0}, s{sSLOT}')
            a(f's_lshl_b32 s{sT0}, s{sT0}, 18')
            a(f's_lshl_b32 s{sT1}, s{sV}, 15')
            a(f's_add_u32 s{sT0}, s{sT0}, s{sT1}')
            a(f's_lshl_b32 s{sT2}, s{sRG}, 8')
            a(f's_add_u32 s{sT0}, s{sT0}, s{sT2}')
            self.wloads(SWO, vW2K, sT0, 2048, vWO)
            a(f's_lshl_b32 s{sT0}, s{sRG}, 7')
            a(f's_lshl_b32 s{sT1}, s{sV}, 4')
            a(f's_add_u32 s{sT0}, s{sT0}, s{sT1}')
            a(f's_mul_i32 s{sT0}, s{sT0}, 7168')
            a(f's_lshl_b32 s{sT1}, s{sTEAM}, 8')
            a(f's_add_u32 s{sT0}, s{sT0}, s{sT1}')
            a(f's_cmp_ge_u32 s{sTEAM}, 28')
            a(f's_cselect_b32 s{sT1}, 0x20000000, 0')
            a(f'v_or_b32 v{vW7K}, s{sT1}, v{vW7K}')
            a(f'v_or_b32 v{vT0}, s{sT1}, v{vW2K}')
            self.wloads(SG, vW7K, sT0, 7168, vWG)
            self.wloads(SU, vW7K, sT0, 7168, vWU)
            a(f's_lshl_b32 s{sT0}, s{sTEAM}, 18')
            a(f's_lshl_b32 s{sT1}, s{sV}, 15')
            a(f's_add_u32 s{sT0}, s{sT0}, s{sT1}')
            a(f's_add_u32 s{sT0}, s{sT0}, s{sT2}')
            self.wloads(SD, vT0, sT0, 2048, vWD)
        waits = [8, 8, 8 + 16, 16]
        for t in range(4):
            a(f's_waitcnt vmcnt({waits[t]})')
            so = (t % 2) * 8192
            for d in range(8):
                f = vVF + 4 * d
                a(f'ds_read_b64_tr_b16 v[{f}:{f+1}], v{vTR+d} offset:{so}')
                a(f'ds_read_b64_tr_b16 v[{f+2}:{f+3}], v{vTR+d} offset:{so+2048}')
            for d in range(8):
                f = vVF + 4 * d
                a(f's_waitcnt lgkmcnt({14-2*d})')
                c = '0' if t == 0 else f'v[{vO+4*d}:{vO+4*d+3}]'
                a(f'v_mfma_f32_16x16x32_bf16 v[{vO+4*d}:{vO+4*d+3}], v[{f}:{f+3}], v[{vP+4*t}:{vP+4*t+3}], {c}')
            if t < 2: self.vloads(t + 2)
            if t == 1: tail_weights()
        self.stamp(8)
        a(f'v_and_b32 v60, 15, v{vL}')
        a(f'v_mul_u32_u24 v60, {OSTR}, v60')
        a(f'v_lshrrev_b32 v61, 4, v{vL}')
        a(f'v_lshl_add_u32 v60, v61, 4, v60')
        a(f's_lshl_b32 s{sT0}, s{sV}, 14')
        a(f'v_add_u32 v60, s{sT0}, v60')
        a('s_mov_b32 exec_lo, 0x00ff00ff')
        a('s_mov_b32 exec_hi, 0x00ff00ff')
        for d in range(8):
            a(f'ds_write_b128 v60, v[{vO+4*d}:{vO+4*d+3}] offset:{64*d}')
        a('s_mov_b64 exec, -1')
        a(f's_mul_i32 s{sT0}, s{sV}, {OSTR}')
        a(f'v_add_u32 v60, s{sT0}, v{vRED}')
        a(f'v_add_u32 v61, {4*RING}, v60')
        a('s_waitcnt lgkmcnt(0)')
        a('s_barrier')
        for k in range(4):
            base = 60 if k < 2 else 61
            kk = k % 2
            a(f'ds_read2st64_b64 v[{32+4*k}:{35+4*k}], v{base} offset0:{64*kk} offset1:{64*kk+32}')
        a(f's_lshl_b32 s{sT0}, s{sV}, 9')
        a(f's_add_u32 s{sT0}, s{sT0}, s{sOWN}')
        self.sum8pairs(32)
        a(f'buffer_store_dwordx2 v[32:33], v{vRED}, {sr(SWS)}, s{sT0} offen sc1')
        self.stamp(9)
        a(f's_lshr_b32 s{sT1}, s{sX}, 2')
        a(f's_lshl_b32 s{sT1}, s{sT1}, 2')
        a(f's_add_u32 s{sT1}, s{sT1}, s{sSLOT}')
        a(f's_lshl_b32 s{sT1}, s{sT1}, 9')
        a(f's_mul_i32 s{sT0}, s{sKVH}, {STR}')
        a(f's_add_u32 s{sT0}, s{sT0}, s{sT1}')
        a(f's_add_u32 s{sT0}, s{sT0}, s{sV64}')
        loads = []
        for n in range(4):
            loads.append(f's_add_u32 s{sT1}, s{sT0}, {64*n*STR}')
            loads.append(f'buffer_load_dwordx4 v[{36+4*n}:{39+4*n}], v{vGA4}, {sr(SWS)}, s{sT1} offen sc1')
        self.poll(loads, range(36, 52))
        self.stamp(10)
        for k in range(4):
            a(f'v_add_f32 v{36+k}, v{36+k}, v{40+k}')
            a(f'v_add_f32 v{44+k}, v{44+k}, v{48+k}')
        for k in range(4): a(f'v_add_f32 v{36+k}, v{36+k}, v{44+k}')
        self.tred(36, 52)
        a('v_cvt_pk_bf16_f32 v52, v52, v52')
        self.gemv(52, 4, [(vWO, 104)], 108)
        self.out_write([104], L_WO)
        a('s_barrier')
        self.out_reduce(1, L_WO, OFF_PB)
        a(f's_cmp_ge_u32 s{sTEAM}, 28')
        a('s_cbranch_scc1 L_fin')
        a(f's_mul_i32 s{sT0}, s{sRG}, {8*STR}')
        a(f's_add_u32 s{sT0}, s{sT0}, s{sV64}')
        a(f's_add_u32 s{sT0}, s{sT0}, {OFF_PB}')
        a(f's_add_u32 s{sT1}, s{sT0}, {128*STR}')
        self.poll([f'buffer_load_dwordx4 v[36:39], v{vGB}, {sr(SWS)}, s{sT0} offen sc1',
                   f'buffer_load_dwordx4 v[40:43], v{vGB}, {sr(SWS)}, s{sT1} offen sc1'], range(36, 44))
        self.stamp(11)
        for k in range(4): a(f'v_add_f32 v{36+k}, v{36+k}, v{40+k}')
        self.tred(36, 52)
        self.rnd(52, 52)
        a(f'v_mul_f32 v52, v52, v{vGA}')
        self.rnd(52, 52)
        a(f'v_add_f32 v52, v52, v{vXF}')
        self.rnd(vX2, 52)
        a(f'v_readfirstlane_b32 s{sT0}, v{vX2}')
        a(f'v_subrev_f32 v53, s{sT0}, v{vX2}')
        a('v_mul_f32 v54, v53, v53')
        self.allred('v_add_f32', [53, 54], (0, 1, 4, 5), [55, 56])
        a('v_mul_f32 v55, 0x3d800000, v53')
        a('v_fma_f32 v57, -v53, v55, v54')
        a(f'v_add_f32 v56, s{sT0}, v55')
        a('v_min_u32 v56, -2, v56')
        a('v_min_u32 v57, -2, v57')
        a(f's_lshl_b32 s{sT0}, s{sV}, 3')
        a(f's_add_u32 s{sT0}, s{sT0}, s{sOWN}')
        a(f's_add_u32 s{sT0}, s{sT0}, {OFF_ST}')
        a('s_mov_b64 exec, 1')
        a(f'buffer_store_dwordx2 v[56:57], v{vRED}, {sr(SWS)}, s{sT0} offen sc1')
        a('s_mov_b64 exec, -1')
        a(f'v_lshrrev_b32 v58, 3, v{vL}')
        a(f'v_and_b32 v59, 7, v{vL}')
        a(f'v_lshlrev_b32 v59, 3, v59')
        a(f's_mov_b32 s{sT0}, {8*STR}')
        a(f'v_mad_u32_u24 v59, v58, s{sT0}, v59')
        a(f'v_and_b32 v60, 7, v{vL}')
        a(f'v_lshrrev_b32 v61, 2, v60')
        a(f'v_and_b32 v60, 3, v60')
        a(f'v_lshlrev_b32 v60, 4, v60')
        a(f'v_lshl_add_u32 v60, v61, 9, v60')
        a(f'v_mad_u32_u24 v60, v58, s{sT0}, v60')
        a(f's_add_u32 s{sT0}, s{sTB}, {OFF_ST}')
        self.poll([f'buffer_load_dwordx2 v[36:37], v59, {sr(SWS)}, s{sT0} offen sc1'], (36, 37))
        self.stamp(12)
        a(f'v_readfirstlane_b32 s{sT0}, v36')
        a(f'v_subrev_f32 v38, s{sT0}, v36')
        a('v_mul_f32 v39, 0x41800000, v38')
        a('v_fmac_f32 v37, v39, v38')
        self.allred('v_add_f32', [38, 37], (0, 1, 3, 2, 4, 5), [40, 41])
        a('v_mul_f32 v38, 0x3c800000, v38')
        a('v_mul_f32 v37, 0x3a800000, v37')
        a('v_fma_f32 v37, -v38, v38, v37')
        a(f'v_add_f32 v38, s{sT0}, v38')
        self.ln_apply(52, vX2, 38, 37, vCB, vSB, 39)
        self.gemv(52, 4, [(vWG, 104), (vWU, 44)], 108)
        self.out_write([104, 44], L_GU)
        a('s_barrier')
        self.out_reduce(2, L_GU, OFF_PC)
        a(f's_add_u32 s{sT0}, s{sTB}, s{sV64}')
        a(f's_add_u32 s{sT0}, s{sT0}, {OFF_PC}')
        self.poll([f'buffer_load_dwordx4 v[36:39], v60, {sr(SWS)}, s{sT0} offen sc1'], range(36, 40))
        self.stamp(13)
        self.tred(36, 52, bits=(3,))
        self.rnd(52, 52)
        a(f'v_mov_b32_dpp v53, v52 row_ror:4 {DPP}')
        a(f's_mov_b32 s{sT0}, 0xf0f0f0f0')
        a(f's_mov_b32 s{sT1}, 0xf0f0f0f0')
        a(f'v_cndmask_b32 v54, v52, v53, s[{sT0}:{sT1}]')
        a(f'v_cndmask_b32 v55, v53, v52, s[{sT0}:{sT1}]')
        self.silu(54, 54, 56)
        self.rnd(54, 54)
        a('v_mul_f32 v54, v54, v55')
        a('v_cvt_pk_bf16_f32 v54, v54, v54')
        self.gemv(54, 4, [(vWD, 104)], 108)
        self.out_write([104], L_DN)
        a('s_barrier')
        self.out_reduce(1, L_DN, OFF_PD)
        a(f's_cmp_lg_u32 s{sTEAM}, s{sRG}')
        a('s_cbranch_scc1 L_fin')
        a(f's_mul_i32 s{sT0}, s{sRG}, {8*STR}')
        a(f's_add_u32 s{sT0}, s{sT0}, s{sV64}')
        a(f's_add_u32 s{sT0}, s{sT0}, {OFF_PD}')
        a(f's_add_u32 s{sT1}, s{sT0}, {128*STR}')
        for k in range(4): a(f'v_mov_b32 v{40+k}, 0')
        self.poll([f'buffer_load_dwordx4 v[36:39], v{vGB}, {sr(SWS)}, s{sT0} offen sc1',
                   's_mov_b32 exec_hi, 0xffff',
                   f'buffer_load_dwordx4 v[40:43], v{vGB}, {sr(SWS)}, s{sT1} offen sc1',
                   's_mov_b32 exec_hi, -1'], range(36, 44))
        self.stamp(14)
        for k in range(4): a(f'v_add_f32 v{36+k}, v{36+k}, v{40+k}')
        self.tred(36, 52)
        self.rnd(52, 52)
        a(f'v_mul_f32 v52, v52, v{vGBm}')
        self.rnd(52, 52)
        a(f'v_add_f32 v52, v52, v{vX2}')
        a('v_cvt_pk_bf16_f32 v52, v52, v52')
        a(f'v_and_b32 v53, 3, v{vL}')
        a(f'v_lshrrev_b32 v54, 4, v{vL}')
        a('v_lshl_add_u32 v53, v53, 2, v54')
        a('v_lshlrev_b32 v53, 1, v53')
        a(f's_lshl_b32 s{sT0}, s{sRG}, 8')
        a(f's_lshl_b32 s{sT1}, s{sV}, 5')
        a(f's_add_u32 s{sT0}, s{sT0}, s{sT1}')
        a('s_mov_b32 exec_lo, 0x000f000f')
        a('s_mov_b32 exec_hi, 0x000f000f')
        a(f'buffer_store_short v52, v53, {sr(SO)}, s{sT0} offen')
        a('s_mov_b64 exec, -1')
        a('L_fin:')
        if self.stamps:
            a('s_waitcnt vmcnt(0)')
            self.stamp(15)
            a(f's_lshl_b32 s{sT0}, s2, 3')
            a(f's_add_u32 s{sT0}, s{sT0}, s{sV}')
            a(f's_lshl_b32 s{sT0}, s{sT0}, 6')
            a(f's_add_u32 s{sT0}, s{sT0}, {128<<20}')
            a(f'v_lshlrev_b32 v{vT0}, 2, v{vL}')
            a('s_mov_b64 exec, 0xffff')
            a(f'buffer_store_dword v{vST}, v{vT0}, {sr(SWS)}, s{sT0} offen')
        a('L_end:')
        a('s_endpgm')
        footer(a, 256, 256, 102)
        return pad(a.text())

    def sfix(self, t):
        a = self.a
        d = 32 + 16 * (t & 1)
        for r in range(4):
            a(f'v_cndmask_b32 v{d+r}, v{d+4+r}, v{d+r}, s[{sSEL}:{sSEL+1}]')
            a(f'v_cndmask_b32 v{d+8+r}, v{d+12+r}, v{d+8+r}, s[{sSEL}:{sSEL+1}]')
        for r in range(4): a(f'v_permlane32_swap_b32 v{d+r}, v{d+8+r}')
        s = vS + 4 * t
        for r in range(4): a(f'v_add_f32_dpp v{s+r}, v{d+8+r}, v{d+r} row_ror:8 {DPP}')
        for h in range(2):
            x, y = s + 2 * h, s + 2 * h + 1
            a(f'v_cvt_pk_bf16_f32 v{y}, v{x}, v{y}')
            a(f'v_lshlrev_b32 v{x}, 16, v{y}')
            a(f'v_and_b32 v{y}, 0xffff0000, v{y}')
            a(f'v_mul_f32 v{x}, {SCALE}, v{x}')
            a(f'v_mul_f32 v{y}, {SCALE}, v{y}')
            a(f'v_cvt_pk_bf16_f32 v{y}, v{x}, v{y}')
            a(f'v_lshlrev_b32 v{x}, 16, v{y}')
            a(f'v_and_b32 v{y}, 0xffff0000, v{y}')


if __name__ == '__main__':
    out = sys.argv[1]
    stamps = len(sys.argv) > 2 and sys.argv[2] == 'stamps'
    open(out, 'w').write(Gen(stamps=stamps).build())
```

```python
import sys, json
from asmlib import *
from hazard import pad

HDR = open('adaLN_cond__gqa_block_cached__swiglu_ffn__decode.s.ref').read().split('\n')
HDR = [l for l in HDR if l.startswith(';') and '@launch' not in l]

E_PM0, E_PQ, LB = 0, 65536, 131072
PAS = 4352
W_PA = LB
W_M12 = W_PA + 256 * PAS
W_PB = W_M12 + 65536
W_XS = W_PB + 131072
W_PC = W_XS + 8192
W_PD = W_PC + 229376
NCLR = 16
CLRW = 3200
assert W_PD + 65536 <= LB + 512 * CLRW
RING = 16384
L_SCR = 131072
L_M, L_Q, L_QB = L_SCR, L_SCR + 2048, L_SCR + 4096
L_ML, L_F, L_CNT, L_W, L_XS, L_MOD = L_SCR + 6400, L_SCR + 6912, L_SCR + 7168, L_SCR + 7424, L_SCR + 7680, L_SCR + 8448
LDS_BYTES = L_MOD + 2048
L_WO, L_GU, L_DN = 8192, RING + 8192, 3 * RING
OSTR, QSTR = 528, 272
LOG2E, SCALE, EPS = 0x3fb8aa3b, 0x3db504f3, 0x3727c5ac
SPIN = 60000
DPP = 'row_mask:0xf bank_mask:0xf'
NVGPR = 168
OOB = 0x20000000

SK, SV, SWQ, SW1, SU, SD, SM, SWS, SX, SC, SO, SDB = 32, 36, 40, 44, 52, 56, 60, 64, 68, 72, 76, 80
def sr(x): return f's[{x}:{x+3}]'
sV = 3
sKVH, sJ, sKB, sX, sRG, sISX, sTEAM, sSPIN = 84, 85, 86, 87, 88, 89, 90, 91
sT0, sT1, sT2, sT3 = 92, 93, 94, 95
sSEL, sE, sTB, sV64 = 96, 98, 100, 101
sB0, sB1, sWID = 14, 15, 23
sRINGB, sH, sW1B, sW1S, sDNB, sXO, sGA, sDST, sPAO = 4, 5, 6, 7, 8, 9, 10, 11, 48
sDST2, sOWN = 49, 50

vT0, vL, vT1, vCNT, vONE, vST = 0, 1, 2, 5, 6, 7
vKO, vV0, vV1 = 2, 3, 4
vK, vBQ, vD0, vD1, vS = 40, 8, 24, 40, 56
vMASK, vTR = 8, 12
vW1X = 23
vGA4, vG512, vW1, vW2D, vRED, vOW, vC4G = 20, 21, 22, 24, 25, 26, 27
vXF, vM0, vM1, vM2, vX2, vSTG, vCG, vWW = 28, 29, 30, 31, 33, 35, 36, 37
vP, vO, vVF = 72, 88, 120


class Gen:
    def __init__(self, stamps=False, cfg=None):
        self.a = Asm()
        self.stamps = stamps
        self.nlab = 0
        self.cfg = dict(KF=2, TD=3, TDV=63, SLH=16, SLC=8, SL=1, SLA=2, SLS=2, NQ0=4, NQ=28, NMOD=4, NML=8, YW=1, PRIO=[3, 2, 1, 0],
                        W={'preV2': 0, 'preV3': 8, 'preBar': 0, 'dn0': 0},
                        D={'H1': 0, 'A': 0, 'B': 8, 'S': 0, 'C': 12, 'D': 12})
        if cfg:
            cfg = dict(cfg)
            for kk in ('D', 'W'):
                if kk in cfg: self.cfg[kk].update(cfg.pop(kk))
            self.cfg.update(cfg)
        self.vmq = []; self.wnext = 0

    def lab(self, s):
        self.nlab += 1
        return f'L_{s}_{self.nlab}'

    def stamp(self, k):
        if not self.stamps: return
        a = self.a
        a(f's_memrealtime s[{sE}:{sE+1}]')
        a('s_waitcnt lgkmcnt(0)')
        a(f'v_writelane_b32 v{vST}, s{sE}, {k}')

    def rnd(self, dst, src):
        a = self.a
        a(f'v_cvt_pk_bf16_f32 v{dst}, v{src}, v{src}')
        a(f'v_and_b32 v{dst}, 0xffff0000, v{dst}')

    def allred(self, op, regs, bits, tmps):
        a = self.a
        for b in bits:
            if b in (0, 1, 2, 3):
                mod = {0: 'quad_perm:[1,0,3,2]', 1: 'quad_perm:[2,3,0,1]', 2: 'row_ror:4', 3: 'row_ror:8'}[b]
                for r in regs: a(f'{op}_dpp v{r}, v{r}, v{r} {mod} {DPP}')
            else:
                ins = 'v_permlane16_swap_b32' if b == 4 else 'v_permlane32_swap_b32'
                for r, t in zip(regs, tmps): a(f'v_mov_b32 v{t}, v{r}')
                for r, t in zip(regs, tmps): a(f'{ins} v{t}, v{r}')
                for r, t in zip(regs, tmps): a(f'{op} v{r}, v{r}, v{t}')

    def tred(self, x, y, bits=(3, 2)):
        a = self.a
        a(f'v_permlane32_swap_b32 v{x}, v{x+2}')
        a(f'v_permlane32_swap_b32 v{x+1}, v{x+3}')
        a(f'v_add_f32 v{x}, v{x}, v{x+2}')
        a(f'v_add_f32 v{x+1}, v{x+1}, v{x+3}')
        a(f'v_permlane16_swap_b32 v{x}, v{x+1}')
        a(f'v_add_f32 v{y}, v{x}, v{x+1}')
        self.allred('v_add_f32', [y], bits, [])

    def afrag(self, dst, xdup, n):
        for d in range(4):
            self.a(f'v_and_b32_dpp v{dst+d}, v{xdup}, v{vMASK+d} quad_perm:[{n},{n},{n},{n}] {DPP}')

    def mf(self, acc, ab, wb, n, first):
        c = '0' if first else f'v[{acc}:{acc+3}]'
        self.a(f'v_mfma_f32_16x16x32_bf16 v[{acc}:{acc+3}], v[{ab+4*n}:{ab+4*n+3}], v[{wb+4*n}:{wb+4*n+3}], {c}')

    def gemv(self, xdup, mats, abase, wait=None):
        for n in range(4): self.afrag(abase + 4 * n, xdup, n)
        if wait: self.vm_wait(wait)
        for n in range(4):
            for wb, acc in mats: self.mf(acc, abase, wb, n, n == 0)

    def out_write(self, accs, lbase):
        a = self.a
        a('s_mov_b32 exec_hi, 0')
        for b, acc in enumerate(accs):
            off = lbase + 4096 * b
            if off < 65536:
                a(f'ds_write_b128 v{vOW}, v[{acc}:{acc+3}] offset:{off}')
            else:
                a(f'v_add_u32 v{vT1}, {off}, v{vOW}')
                a(f'ds_write_b128 v{vT1}, v[{acc}:{acc+3}]')
        a('s_mov_b64 exec, -1')
        a('s_waitcnt lgkmcnt(0)')

    def silu(self, dst, src, t):
        a = self.a
        a(f's_mov_b32 s{sT2}, 0xbfb8aa3b')
        a(f'v_max_f32 v{t+2}, 0xc2b00000, v{src}')
        a(f'v_min_f32 v{t+2}, 0x42c80000, v{t+2}')
        a(f'v_mul_f32 v{t}, s{sT2}, v{t+2}')
        a(f'v_fma_f32 v{t+1}, v{t+2}, s{sT2}, -v{t}')
        a(f'v_fmac_f32 v{t+1}, 0xb2a57060, v{t+2}')
        a(f'v_exp_f32 v{t}, v{t}')
        a(f'v_mul_f32 v{t+1}, 0x3f317218, v{t+1}')
        a(f'v_fmac_f32 v{t}, v{t}, v{t+1}')
        a(f'v_add_f32 v{t}, 1.0, v{t}')
        a(f'v_rcp_f32 v{t+1}, v{t}')
        a(f'v_fma_f32 v{t+2}, -v{t}, v{t+1}, 1.0')
        a(f'v_fmac_f32 v{t+1}, v{t+2}, v{t+1}')
        a(f'v_mul_f32 v{t+2}, v{src}, v{t+1}')
        a(f'v_fma_f32 v{t+3}, -v{t}, v{t+2}, v{src}')
        a(f'v_fmac_f32 v{t+2}, v{t+3}, v{t+1}')
        a(f'v_fma_f32 v{t+3}, -v{t}, v{t+2}, v{src}')
        a(f'v_fma_f32 v{dst}, v{t+3}, v{t+1}, v{t+2}')

    def ln_stats(self, mean, var):
        a = self.a
        self.rnd(var, var)
        a(f'v_add_f32 v{var}, {EPS}, v{var}')
        self.rnd(var, var)
        a(f'v_sqrt_f32 v{var}, v{var}')
        self.rnd(mean, mean)
        self.rnd(var, var)
        a(f'v_rcp_f32 v{var}, v{var}')

    def ln_apply(self, dst, x, mean, rsd, c1, sh, t):
        a = self.a
        a(f'v_sub_f32 v{t}, v{x}, v{mean}')
        self.rnd(t, t)
        a(f'v_mul_f32 v{t}, v{t}, v{rsd}')
        self.rnd(t, t)
        a(f'v_mul_f32 v{t}, v{t}, v{c1}')
        self.rnd(t, t)
        a(f'v_add_f32 v{t}, v{t}, v{sh}')
        a(f'v_cvt_pk_bf16_f32 v{dst}, v{t}, v{t}')

    def vm(self, tag, line):
        self.a(line); self.vmq.append(tag)

    def vm_wait(self, tag):
        idx = [i for i, t in enumerate(self.vmq) if t == tag]
        if not idx: return
        n = len(self.vmq) - 1 - idx[-1]
        self.a(f's_waitcnt vmcnt({min(n,63)})')
        self.vmq = self.vmq[idx[-1] + 1:]

    def lds_arrive(self, k):
        a = self.a
        a('s_waitcnt lgkmcnt(0)')
        a('s_mov_b64 exec, 1')
        a(f'ds_add_u32 v{vCNT}, v{vONE} offset:{4*k}')
        a('s_mov_b64 exec, -1')

    def lds_wait(self, k, n, sleep=0):
        a = self.a
        lr, lo = self.lab('lw'), self.lab('lwok')
        a(f's_mov_b32 s{sSPIN}, 0')
        a(f'{lr}:')
        a(f'ds_read_b32 v{vT0}, v{vCNT} offset:{4*k}')
        a('s_waitcnt lgkmcnt(0)')
        a(f'v_cmp_gt_u32 vcc, {n}, v{vT0}')
        a(f's_cbranch_vccz {lo}')
        a(f's_add_u32 s{sSPIN}, s{sSPIN}, 1')
        a(f's_cmp_gt_u32 s{sSPIN}, {SPIN*16}')
        a('s_cbranch_scc1 L_end')
        if sleep: a(f's_sleep {sleep}')
        a(f's_branch {lr}')
        a(f'{lo}:')

    def check(self, chk):
        a = self.a
        c = list(chk)
        if len(c) == 2:
            a(f'v_max_u32 v{vT0}, v{c[0]}, v{c[1]}'); c = []
        else:
            a(f'v_max3_u32 v{vT0}, v{c[0]}, v{c[1]}, v{c[2]}'); c = c[3:]
        while len(c) >= 2:
            a(f'v_max3_u32 v{vT0}, v{vT0}, v{c[0]}, v{c[1]}'); c = c[2:]
        if c: a(f'v_max_u32 v{vT0}, v{vT0}, v{c[0]}')
        a(f'v_cmp_eq_u32 vcc, -1, v{vT0}')

    def issue(self, tag, loads):
        for l in loads:
            if l.startswith('buffer_'): self.vm(tag, l)
            else: self.a(l)

    def validate(self, tag, loads, chk, sleep=1, rec=None):
        a = self.a
        lr, lo = self.lab('retry'), self.lab('ok')
        self.vm_wait(tag)
        a(f's_mov_b32 s{sSPIN}, 0')
        a(f'{lr}:')
        self.check(chk)
        a(f's_cbranch_vccz {lo}')
        a(f's_add_u32 s{sSPIN}, s{sSPIN}, 1')
        a(f's_cmp_gt_u32 s{sSPIN}, {SPIN}')
        a('s_cbranch_scc1 L_end')
        if sleep: a(f's_sleep {sleep}')
        a('s_mov_b64 exec, vcc')
        for l in loads: a(l)
        a('s_waitcnt vmcnt(0)')
        a(f's_branch {lr}')
        a(f'{lo}:')
        a('s_mov_b64 exec, -1')
        if self.stamps and rec is not None:
            a(f's_add_u32 s{sSPIN}, s{sSPIN}, 1')
            a(f'v_writelane_b32 v{vST}, s{sSPIN}, {16+rec}')

    def red_pub(self, lo, hi, lbase, sdst, blkstride, nparts, t, wait=None):
        a = self.a
        ls = self.lab('nored')
        one = hi - lo == 1
        assert lo == 0
        if one:
            a(f's_cmp_lg_u32 s{sV}, {lo}')
            a(f's_cbranch_scc1 {ls}')
            if wait: self.lds_wait(*wait)
            a(f'v_add_u32 v{vT1}, {lbase}, v{vRED}')
        else:
            a(f's_cmp_ge_u32 s{sV}, {hi}')
            a(f's_cbranch_scc1 {ls}')
            if wait: self.lds_wait(*wait)
            a(f's_lshl_b32 s{sT0}, s{sV}, 12')
            a(f's_add_u32 s{sT0}, s{sT0}, {lbase}')
            a(f'v_add_u32 v{vT1}, s{sT0}, v{vRED}')
        for k in range(nparts // 2):
            a(f'ds_read2st64_b64 v[{t+4*k}:{t+4*k+3}], v{vT1} offset0:{2*k} offset1:{2*k+1}')
        so = sdst
        if not one:
            a(f's_mul_i32 s{sT0}, s{sV}, {blkstride}')
            a(f's_add_u32 s{sT0}, s{sT0}, s{sdst}')
            so = sT0
        pk = lambda x, y: a(f'v_pk_add_f32 v[{x}:{x+1}], v[{x}:{x+1}], v[{y}:{y+1}]')
        if nparts == 8:
            a('s_waitcnt lgkmcnt(2)')
            pk(t, t + 2); pk(t + 4, t + 6)
            a('s_waitcnt lgkmcnt(0)')
            pk(t + 8, t + 10); pk(t + 12, t + 14); pk(t, t + 4); pk(t + 8, t + 12); pk(t, t + 8)
        else:
            a('s_waitcnt lgkmcnt(0)')
            pk(t, t + 2); pk(t + 4, t + 6); pk(t, t + 4)
        a(f'v_min_u32 v{t}, -2, v{t}')
        a(f'v_min_u32 v{t+1}, -2, v{t+1}')
        a(f'buffer_store_dwordx2 v[{t}:{t+1}], v{vRED}, {sr(SWS)}, s{so} offen sc1')
        a(f'{ls}:')

    def kl(self, j0, j1, depth=63):
        a = self.a
        for j in range(j0, j1):
            t, u, hf = j // 8, (j % 8) // 2, j % 2
            if j % 4 == 0 or j == j0:
                a(f's_add_u32 s{sT3}, s{sKB}, {t*512*8192 + (u//2)*4096}')
            if depth < 63 and len(self.vmq) >= depth: a(f's_waitcnt vmcnt({depth-1})')
            r = vK + 4 * j
            self.vm(f'K{t}', f'buffer_load_dwordx4 v[{r}:{r+3}], v{vKO}, {sr(SK)}, s{sT3} offen offset:{(u%2)*2048+hf*128} nt')

    def vl(self, t, depth=63):
        a = self.a
        for e in range(8):
            if e % 4 == 0:
                a(f's_add_u32 m0, s{sRINGB}, {(t%2)*8192 + (e//4)*4096}')
                a(f's_add_u32 s{sT3}, s{sKB}, {t*512*8192 + (e//4)*4096}')
            if depth < 63 and len(self.vmq) >= depth: a(f's_waitcnt vmcnt({depth-1})')
            vo = vV0 if e % 2 == 0 else vV1
            self.vm(f'V{t}', f'buffer_load_dwordx4 v{vo}, {sr(SV)}, s{sT3} offen offset:{(e%4)*1024} nt lds')

    def delay(self, name):
        n = self.cfg['D'].get(name, 0)
        while n > 0:
            self.a(f's_sleep {min(n,127)}'); n -= 127

    def gemv_consts(self, g, i, c, t):
        a = self.a
        a(f'v_lshrrev_b32 v{t}, 1, v{i}')
        a(f'v_and_b32 v{t+1}, 1, v{i}')
        a(f'v_lshlrev_b32 v{t+1}, 4, v{t+1}')
        a(f'v_mov_b32 v{t+2}, 0xffff')
        a(f'v_lshlrev_b32 v{t+1}, v{t+1}, v{t+2}')
        for d in range(4):
            a(f'v_cmp_eq_u32 vcc, {d}, v{t}')
            a(f'v_cndmask_b32 v{vMASK+d}, 0, v{t+1}, vcc')
        a(f'v_lshlrev_b32 v{vRED}, 3, v{vL}')
        a(f's_lshl_b32 s{sT0}, s{sV}, 9')
        a(f'v_lshlrev_b32 v{vOW}, 5, v{i}')
        a(f'v_lshl_add_u32 v{vOW}, v{g}, 4, v{vOW}')
        a(f'v_add_u32 v{vOW}, s{sT0}, v{vOW}')

    def finish(self):
        a = self.a
        if self.stamps:
            a('s_waitcnt vmcnt(0)')
            self.stamp(15)
            a(f's_mul_i32 s{sT0}, s2, 12')
            a(f's_add_u32 s{sT0}, s{sT0}, s{sWID}')
            a(f's_lshl_b32 s{sT0}, s{sT0}, 7')
            a(f's_add_u32 s{sT0}, s{sT0}, {128<<20}')
            a(f'v_lshlrev_b32 v{vT0}, 2, v{vL}')
            a('s_mov_b32 exec_hi, 0')
            a(f'buffer_store_dword v{vST}, v{vT0}, {sr(SWS)}, s{sT0} offen')
        a('s_endpgm')

    def sum_halves(self, b, n):
        a = self.a
        step = 1
        while step < n:
            for q in range(0, n, 2 * step):
                for k in range(4): a(f'v_add_f32 v{b+4*q+k}, v{b+4*q+k}, v{b+4*(q+step)+k}')
            step *= 2
        a(f'v_permlane32_swap_b32 v{b}, v{b+2}')
        a(f'v_permlane32_swap_b32 v{b+1}, v{b+3}')
        a(f'v_add_f32 v{b}, v{b}, v{b+2}')
        a(f'v_add_f32 v{b+1}, v{b+1}, v{b+3}')

    def sfix(self, t):
        a = self.a
        d = vD1 if t & 1 else vD0
        for r in range(4):
            a(f'v_cndmask_b32 v{d+r}, v{d+4+r}, v{d+r}, s[{sSEL}:{sSEL+1}]')
            a(f'v_cndmask_b32 v{d+8+r}, v{d+12+r}, v{d+8+r}, s[{sSEL}:{sSEL+1}]')
        for r in range(4): a(f'v_permlane32_swap_b32 v{d+r}, v{d+8+r}')
        s = vS + 4 * t
        for r in range(4): a(f'v_add_f32_dpp v{s+r}, v{d+8+r}, v{d+r} row_ror:8 {DPP}')
        for h in range(2):
            x, y = s + 2 * h, s + 2 * h + 1
            a(f'v_cvt_pk_bf16_f32 v{y}, v{x}, v{y}')
            a(f'v_lshlrev_b32 v{x}, 16, v{y}')
            a(f'v_and_b32 v{y}, 0xffff0000, v{y}')
            a(f'v_mul_f32 v{x}, {SCALE}, v{x}')
            a(f'v_mul_f32 v{y}, {SCALE}, v{y}')
            a(f'v_cvt_pk_bf16_f32 v{y}, v{x}, v{y}')
            a(f'v_lshlrev_b32 v{x}, 16, v{y}')
            a(f'v_and_b32 v{y}, 0xffff0000, v{y}')

    def base(self, d, b):
        self.a(f's_mov_b32 s{d}, s{b}'); self.a(f's_and_b32 s{d+1}, s{b+1}, 0xffff')

    def build(self):
        a = self.a
        for l in HDR: a(l)
        header(a, 256, 768, LDS_BYTES, '; @stamps 12 16' if self.stamps else '')
        a('s_cmp_ge_u32 s2, 256')
        a('s_cbranch_scc1 L_end')
        a('s_load_dwordx16 s[4:19], s[0:1], 0')
        a('s_load_dwordx8 s[20:27], s[0:1], 64')
        a('s_load_dwordx4 s[28:31], s[0:1], 96')
        a(f'v_lshrrev_b32 v2, 6, v0')
        a(f'v_and_b32 v{vL}, 63, v0')
        a(f'v_readfirstlane_b32 s{sV}, v2')
        if self.stamps: a(f'v_mov_b32 v{vST}, 0')
        a(f'v_lshrrev_b32 v32, 4, v{vL}')
        a(f'v_and_b32 v33, 15, v{vL}')
        a(f'v_mov_b32 v{vCNT}, {L_CNT}')
        a(f'v_mov_b32 v{vONE}, 1')
        a(f's_and_b32 s{sKVH}, s2, 3')
        a(f's_and_b32 s{sX}, s2, 7')
        a(f's_bfe_u32 s{sRG}, s2, 0x30003')
        a(f's_bfe_u32 s{sJ}, s2, 0x40003')
        a(f's_lshr_b32 s{sISX}, s2, 7')
        for d, n in ((SK, 64 << 20), (SM, 12 << 20), (SC, 2048), (SWS, 256 << 20), (SX, 2048), (SWQ, 8 << 20), (SDB, 256), (SV, 64 << 20)):
            a(f's_mov_b32 s{d+2}, {n}'); a(f's_mov_b32 s{d+3}, 0x20000')
        a(f's_cmp_lt_u32 s{sV}, 4')
        a('s_cbranch_scc1 L_chain')
        self.attention()
        a('L_chain:')
        self.chain()
        a('L_end:')
        a('s_endpgm')
        footer(a, NVGPR, NVGPR, 102)
        return pad(a.text())

    def cnt_check(self):
        a = self.a
        lo, lr = self.lab('cntok'), self.lab('cnt')
        for k in range(4):
            if k: a(f's_sleep {self.cfg["SLC"]}')
            a(f's_load_dword s{sT0}, s[28:29], {64*k}')
            a('s_waitcnt lgkmcnt(0)')
            a(f's_cmp_ge_u32 s{sT0}, 16')
            a(f's_cbranch_scc1 {lo}')
        a(f's_mov_b32 s{sSPIN}, 0')
        a('v_mov_b32 v12, 0')
        a(f'{lr}:')
        a(f's_sleep {self.cfg["SLH"]}')
        a(f'buffer_load_dword v13, v12, {sr(SDB)}, 0 offen sc1')
        a('s_waitcnt vmcnt(0)')
        a('v_cmp_gt_u32 vcc, 16, v13')
        a(f's_cbranch_vccz {lo}')
        a(f's_add_u32 s{sSPIN}, s{sSPIN}, 1')
        a(f's_cmp_gt_u32 s{sSPIN}, {SPIN}')
        a('s_cbranch_scc1 L_end')
        a(f's_branch {lr}')
        a(f'{lo}:')

    def init_barrier(self):
        a = self.a
        l = self.lab('noinit')
        a(f's_cmp_lg_u32 s{sV}, 0')
        a(f's_cbranch_scc1 {l}')
        a(f'v_mov_b32 v12, 0')
        a(f'v_lshl_add_u32 v13, v{vL}, 2, v{vCNT}')
        a('s_mov_b64 exec, 0xffff')
        a('ds_write_b32 v13, v12')
        a('s_mov_b64 exec, -1')
        a('s_waitcnt lgkmcnt(0)')
        a(f'{l}:')
        a('s_barrier')

    def chain(self):
        a = self.a; cfg = self.cfg
        a('s_setprio 3')
        a(f'v_and_b32 v34, 3, v{vL}')
        a(f'v_lshlrev_b32 v36, 4, v33')
        a(f'v_mul_u32_u24 v37, 12288, v32')
        a(f'v_add_u32 v37, v37, v36')
        a(f'v_lshl_add_u32 v38, v32, 13, v36')
        a(f'v_lshl_add_u32 v{vC4G}, v34, 2, v32')
        a(f'v_lshlrev_b32 v{vC4G}, 1, v{vC4G}')
        a(f'v_lshlrev_b32 v39, 4, v{vL}')
        a(f's_cmp_lg_u32 s{sISX}, 0')
        a('s_cbranch_scc1 L_chain_x')
        self.vmq = []
        a(f's_lshr_b32 s{sT0}, s{sJ}, 1')
        a(f's_lshl_b32 s{sT1}, s{sT0}, 7')
        a(f's_lshl_b32 s{sT2}, s{sV}, 5')
        a(f's_add_u32 s{sT1}, s{sT1}, s{sT2}')
        a(f's_lshl_b32 s{sT3}, s{sT1}, 1')
        a(f's_mul_i32 s{sKB}, s{sT1}, 12288')
        a(f's_lshl_b32 s{sT1}, s{sKVH}, 1')
        a(f's_lshr_b32 s{sT2}, s{sX}, 2')
        a(f's_add_u32 s{sT1}, s{sT1}, s{sT2}')
        a(f's_and_b32 s{sT2}, s{sJ}, 1')
        a(f's_lshl_b32 s{sT2}, s{sT2}, 3')
        a(f's_add_u32 s{sT1}, s{sT1}, s{sT2}')
        a(f's_lshl_b32 s{sT2}, s{sT1}, 8')
        a(f's_add_u32 s{sKB}, s{sKB}, s{sT2}')
        a(f's_lshl_b32 s{sT1}, s{sT1}, 3')
        a(f's_add_u32 s{sT1}, s{sT1}, s{sT0}')
        a(f's_lshl_b32 s{sDST2}, s{sT1}, 9')
        a(f's_lshr_b32 s{sT0}, s{sX}, 2')
        a(f's_lshl_b32 s{sT0}, s{sT0}, 4')
        a(f's_add_u32 s{sT0}, s{sT0}, s{sJ}')
        a(f's_lshl_b32 s{sT1}, s{sT0}, 2')
        a(f's_add_u32 s{sT1}, s{sT1}, s{sKVH}')
        a(f's_lshl_b32 s{sT1}, s{sT1}, 9')
        a(f's_add_u32 s{sOWN}, s{sT1}, {E_PQ}')
        a(f's_lshl_b32 s{sT0}, s{sT0}, 8')
        a(f's_lshl_b32 s{sT1}, s{sKVH}, 21')
        a(f's_add_u32 s{sT0}, s{sT0}, s{sT1}')
        a(f's_lshl_b32 s{sT1}, s{sV}, 19')
        a(f's_add_u32 s{sTB}, s{sT0}, s{sT1}')
        a('s_waitcnt lgkmcnt(0)')
        self.stamp(0)
        self.base(SC, 22); self.base(SM, 24)
        self.vm('c', f'buffer_load_ushort v16, v{vC4G}, {sr(SC)}, s{sT3} offen')
        self.vm('c', f'buffer_load_ushort v17, v{vC4G}, {sr(SC)}, s{sT3} offen offset:32')
        for n in range(8):
            self.vm('wm0', f'buffer_load_dwordx4 v[{40+4*n}:{43+4*n}], v37, {sr(SM)}, s{sKB} offen nt')
            if n < 7: a(f's_add_u32 s{sKB}, s{sKB}, {4*12288}')
        self.base(SX, 4); self.base(SWQ, 10); self.base(SWS, 30); self.base(SDB, 28)
        a(f's_mov_b32 s{sWID}, s{sV}')
        a(f's_lshl_b32 s{sT0}, s2, 2')
        a(f's_add_u32 s{sT0}, s{sT0}, s{sV}')
        a(f's_mul_i32 s{sT0}, s{sT0}, {CLRW}')
        a(f's_add_u32 s{sT0}, s{sT0}, {LB}')
        for k in range(4): a(f'v_mov_b32 v{28+k}, -1')
        for k in range(4):
            if k == 3: a(f's_mov_b64 exec, {(1 << ((CLRW - 3072) // 16)) - 1}')
            self.vm('clr', f'buffer_store_dwordx4 v[28:31], v39, {sr(SWS)}, s{sT0} offen offset:{1024*k} sc1')
        a('s_mov_b64 exec, -1')
        self.init_barrier()
        a(f'v_lshlrev_b32 v35, 5, v{vL}')
        self.vm('x', f'buffer_load_dwordx4 v[136:139], v35, {sr(SX)}, 0 offen')
        self.vm('x', f'buffer_load_dwordx4 v[140:143], v35, {sr(SX)}, 0 offen offset:16')
        a(f's_lshl_b32 s{sT0}, s{sKVH}, 9')
        a(f's_lshl_b32 s{sT1}, s{sV}, 7')
        a(f's_add_u32 s{sT0}, s{sT0}, s{sT1}')
        for k in range(4):
            self.vm('x', f'buffer_load_ushort v{20+k}, v{vC4G}, {sr(SX)}, s{sT0} offen offset:{32*k}')
        def wq(n0, n1):
            for n in range(n0, n1):
                a(f's_add_u32 s{sT2}, s{sTB}, {4*n*8192}')
                self.vm('wq', f'buffer_load_dwordx4 v[{72+4*n}:{75+4*n}], v38, {sr(SWQ)}, s{sT2} offen nt')
        self.gemv_consts(32, 33, 34, 12)
        self.vm_wait('c')
        for k in range(2):
            a(f'v_lshlrev_b32 v{16+k}, 16, v{16+k}')
            self.silu(16 + k, 16 + k, 12)
            a(f'v_cvt_pk_bf16_f32 v{16+k}, v{16+k}, v{16+k}')
        for n in range(4): self.afrag(144 + 4 * n, 16, n)
        self.vm_wait('wm0')
        for n in range(4): self.mf(160, 144, 40, n, n == 0)
        for n in range(4): self.afrag(144 + 4 * n, 17, n)
        for n in range(4): self.mf(160, 144, 56, n, False)
        self.stamp(1)
        self.out_write([160], L_M)
        a('s_waitcnt vmcnt(0)')
        self.vmq = []
        self.lds_arrive(0)
        a(f's_cmp_lg_u32 s{sV}, 0')
        a('s_cbranch_scc1 L_y_nocnt')
        self.cnt_check()
        self.lds_arrive(1)
        self.stamp(7)
        a('L_y_nocnt:')
        self.red_pub(0, 1, L_M, sDST2, 0, 4, 12, wait=(0, 4))
        self.stamp(2)
        wq(0, 16)
        self.vm_wait('x')
        for k in range(8):
            a(f'v_lshlrev_b32 v{144+2*k}, 16, v{136+k}')
            a(f'v_and_b32 v{145+2*k}, 0xffff0000, v{136+k}')
        a('v_add_f32 v28, v144, v145')
        for k in range(2, 16): a(f'v_add_f32 v28, v28, v{144+k}')
        self.allred('v_add_f32', [28], (0, 1, 3, 2, 4, 5), [12])
        a(f'v_mul_f32 v28, 0x3a800000, v28')
        for k in range(16): a(f'v_sub_f32 v{144+k}, v{144+k}, v28')
        a('v_mul_f32 v29, v144, v144')
        for k in range(1, 16): a(f'v_fmac_f32 v29, v{144+k}, v{144+k}')
        self.allred('v_add_f32', [29], (0, 1, 3, 2, 4, 5), [12])
        a(f'v_mul_f32 v29, 0x3a800000, v29')
        self.ln_stats(28, 29)
        for k in range(4): a(f'v_lshlrev_b32 v{20+k}, 16, v{20+k}')
        a(f'v_lshrrev_b32 v12, 3, v{vL}')
        a(f'v_lshlrev_b32 v12, 9, v12')
        a(f'v_bfe_u32 v13, v{vL}, 2, 1')
        a(f'v_lshl_add_u32 v12, v13, 15, v12')
        a(f'v_lshl_add_u32 v30, v34, 4, v12')
        a(f's_lshl_b32 s{sT0}, s{sKVH}, 1')
        a(f's_lshr_b32 s{sT1}, s{sV}, 1')
        a(f's_add_u32 s{sT0}, s{sT0}, s{sT1}')
        a(f's_lshl_b32 s{sT0}, s{sT0}, 12')
        a(f's_and_b32 s{sT1}, s{sV}, 1')
        a(f's_lshl_b32 s{sT1}, s{sT1}, 8')
        a(f's_add_u32 s{sB0}, s{sT0}, s{sT1}')
        loads = [f'buffer_load_dwordx4 v[{40+4*n}:{43+4*n}], v30, {sr(SWS)}, s{sB0} offen offset:{64*n} sc1' for n in range(4)]
        self.vm_wait('wq')
        self.lds_wait(1, 1)
        self.delay('H1')
        self.issue('h1', loads)
        self.validate('h1', loads, range(40, 56), sleep=cfg['SLH'], rec=0)
        self.stamp(3)
        a(f's_mov_b32 s{sSEL}, 0xf0f0f0f0')
        a(f's_mov_b32 s{sSEL+1}, 0xf0f0f0f0')
        for hh in range(4):
            self.tred(40 + 4 * hh, 136, bits=(3,))
            self.rnd(136, 136)
            a(f'v_mov_b32_dpp v137, v136 row_ror:4 {DPP}')
            a(f'v_cndmask_b32 v138, v136, v137, s[{sSEL}:{sSEL+1}]')
            a(f'v_cndmask_b32 v139, v137, v136, s[{sSEL}:{sSEL+1}]')
            a('v_add_f32 v139, 1.0, v139')
            self.rnd(139, 139)
            self.ln_apply(140, 20 + hh, 28, 29, 139, 138, 141)
            for n in range(4): self.afrag(144 + 4 * n, 140, n)
            for n in range(4): self.mf(160, 144, 72 + 16 * hh, n, n == 0 and hh == 0)
        self.out_write([160], L_Q)
        self.lds_arrive(2)
        self.red_pub(0, 1, L_Q, sOWN, 0, 4, 12, wait=(2, 4))
        self.stamp(4)
        a('s_branch L_h2')
        a('L_chain_x:')
        self.vmq = []
        a(f's_and_b32 s{sT0}, s2, 127')
        a(f's_lshl_b32 s{sT1}, s{sT0}, 9')
        a(f's_add_u32 s{sDST2}, s{sT1}, {W_M12}')
        a(f's_lshl_b32 s{sT1}, s{sKVH}, 8')
        a(f's_lshl_b32 s{sT2}, s{sV}, 6')
        a(f's_add_u32 s{sT1}, s{sT1}, s{sT2}')
        a(f's_lshl_b32 s{sT3}, s{sT1}, 1')
        a(f's_mul_i32 s{sKB}, s{sT1}, 12288')
        a(f's_lshr_b32 s{sT1}, s{sT0}, 2')
        a(f's_lshl_b32 s{sT1}, s{sT1}, 8')
        a(f's_add_u32 s{sKB}, s{sKB}, s{sT1}')
        a(f's_add_u32 s{sKB}, s{sKB}, 4096')
        a('s_waitcnt lgkmcnt(0)')
        self.stamp(0)
        self.base(SWS, 30); self.base(SDB, 28); self.base(SC, 22); self.base(SM, 24)
        a(f's_mov_b32 s{sWID}, s{sV}')
        self.init_barrier()
        for k in range(4):
            self.vm('c', f'buffer_load_ushort v{16+k}, v{vC4G}, {sr(SC)}, s{sT3} offen offset:{32*k}')
        for n in range(16):
            self.vm(f'wm{n//4}', f'buffer_load_dwordx4 v[{40+4*n}:{43+4*n}], v37, {sr(SM)}, s{sKB} offen nt')
            if n < 15: a(f's_add_u32 s{sKB}, s{sKB}, {4*12288}')
        self.gemv_consts(32, 33, 34, 12)
        self.vm_wait('c')
        for k in range(4):
            a(f'v_lshlrev_b32 v{16+k}, 16, v{16+k}')
            self.silu(16 + k, 16 + k, 12)
            a(f'v_cvt_pk_bf16_f32 v{16+k}, v{16+k}, v{16+k}')
        for k in range(4):
            for n in range(4): self.afrag(144 + 4 * n, 16 + k, n)
            self.vm_wait(f'wm{k}')
            for n in range(4): self.mf(160, 144, 40 + 16 * k, n, n == 0 and k == 0)
        self.out_write([160], L_M)
        self.lds_arrive(0)
        self.stamp(2)
        self.cnt_check()
        a('L_h2:')
        self.vmq = []
        a(f'v_lshrrev_b32 v32, 5, v{vL}')
        a(f'v_and_b32 v33, 31, v{vL}')
        a(f'v_lshlrev_b32 v34, 4, v33')
        a(f'v_lshl_add_u32 v37, v32, 3, v34')
        a(f'v_lshrrev_b32 v38, 1, v37')
        a(f's_mul_i32 s{sT0}, s{sV}, {2*QSTR}')
        a(f's_add_u32 s{sT0}, s{sT0}, {L_QB}')
        a(f'v_add_u32 v38, s{sT0}, v38')
        a(f's_lshl_b32 s{sT0}, s{sV}, 9')
        a(f's_add_u32 s{sT0}, s{sT0}, {L_MOD}')
        a(f'v_add_u32 v37, s{sT0}, v37')
        a(f's_lshl_b32 s{sT0}, s{sKVH}, 2')
        a(f's_add_u32 s{sT0}, s{sT0}, s{sV}')
        a(f's_lshl_b32 s{sT0}, s{sT0}, 12')
        a(f's_add_u32 s{sB0}, s{sT0}, {E_PQ}')
        loads = [f'buffer_load_dwordx4 v[{40+4*n}:{43+4*n}], v39, {sr(SWS)}, s{sB0} offen offset:{1024*n} sc1' for n in range(4)]
        self.lds_wait(6, 1, sleep=4)
        self.issue('h2', loads)
        self.validate('h2', loads, range(40, 56), sleep=cfg['SLH'], rec=1)
        for hh in range(2):
            b = 40 + 8 * hh
            self.sum_halves(b, 2)
            a(f'v_cvt_pk_bf16_f32 v{b}, v{b}, v{b+1}')
            a(f'ds_write_b32 v38, v{b} offset:{QSTR*hh}')
        self.lds_arrive(3)
        self.stamp(5)
        a(f's_cmp_eq_u32 s{sV}, 0')
        a('s_cbranch_scc1 L_g0')
        a(f's_lshl_b32 s{sT0}, s{sV}, 3')
        a(f's_add_u32 s{sT0}, s{sT0}, s{sRG}')
        a(f's_cmp_eq_u32 s{sISX}, 0')
        a('s_cbranch_scc1 L_modgo')
        a(f's_cmp_lg_u32 s{sJ}, 15')
        a('s_cbranch_scc1 L_chain_fin')
        a(f's_cmp_lg_u32 s{sV}, 1')
        a('s_cbranch_scc1 L_chain_fin')
        a(f's_mov_b32 s{sT0}, s{sX}')
        a('L_modgo:')
        a(f's_lshl_b32 s{sT0}, s{sT0}, 11')
        a(f's_add_u32 s{sB0}, s{sT0}, {W_M12}')
        modl = [f'buffer_load_dwordx4 v[{56+4*n}:{59+4*n}], v39, {sr(SWS)}, s{sB0} offen offset:{1024*n} sc1' for n in range(2)]
        self.lds_wait(4, cfg['NMOD'], sleep=8)
        self.issue('mod', modl)
        self.validate('mod', modl, range(56, 64), sleep=cfg['SLH'], rec=2)
        self.sum_halves(56, 2)
        self.rnd(56, 56); self.rnd(57, 57)
        a(f's_cmp_lg_u32 s{sV}, 2')
        a('s_cbranch_scc1 L_nocb')
        a('v_add_f32 v56, 1.0, v56')
        a('v_add_f32 v57, 1.0, v57')
        self.rnd(56, 56); self.rnd(57, 57)
        a('L_nocb:')
        a('ds_write_b64 v37, v[56:57]')
        a('s_branch L_chain_fin')
        a('L_g0:')
        a(f's_cmp_eq_u32 s{sISX}, 0')
        a('s_cbranch_scc1 L_chain_fin')
        self.vmq = []
        self.red_pub(0, 1, L_M, sDST2, 0, 4, 12, wait=(0, 4))
        a(f's_lshr_b32 s{sT0}, s{sX}, 2')
        a(f's_lshl_b32 s{sT0}, s{sT0}, 2')
        a(f's_lshr_b32 s{sT1}, s{sJ}, 2')
        a(f's_add_u32 s{sT0}, s{sT0}, s{sT1}')
        a(f's_lshl_b32 s{sT0}, s{sT0}, 3')
        a(f's_mul_i32 s{sT1}, s{sKVH}, {PAS}')
        a(f's_add_u32 s{sT0}, s{sT0}, s{sT1}')
        a(f's_add_u32 s{sB0}, s{sT0}, {W_PA + 4096}')
        a(f'v_and_b32 v20, 3, v{vL}')
        a(f'v_lshrrev_b32 v21, 2, v{vL}')
        a(f'v_lshl_add_u32 v20, v20, 4, v21')
        a(f'v_mul_u32_u24 v20, {4*PAS}, v20')
        mll = [f'buffer_load_dwordx2 v[22:23], v20, {sr(SWS)}, s{sB0} offen sc1']
        self.lds_wait(7, cfg['NML'], sleep=8)
        self.issue('ml', mll)
        self.validate('ml', mll, (22, 23), sleep=cfg['SLH'], rec=3)
        a('v_mov_b32 v16, v22')
        self.allred('v_max_f32', [16], (0, 1, 3, 2, 4, 5), [17])
        a('v_sub_f32 v22, v22, v16')
        a(f'v_mul_f32 v22, {LOG2E}, v22')
        a('v_exp_f32 v22, v22')
        a('v_mul_f32 v23, v23, v22')
        self.allred('v_add_f32', [23], (0, 1, 3, 2, 4, 5), [17])
        a('v_rcp_f32 v23, v23')
        a(f'v_lshlrev_b32 v16, 2, v{vL}')
        a(f'v_add_u32 v16, {L_W}, v16')
        a('v_mul_f32 v22, v22, v23')
        a('ds_write_b32 v16, v22')
        self.stamp(6)
        a('L_chain_fin:')
        a('s_waitcnt lgkmcnt(0)')
        self.finish()

    def w1(self, n, vo=None):
        a = self.a
        for _ in range(n):
            j = self.wnext
            if j >= 8: return
            self.wnext += 1
            k, b = j // 2, j % 2
            if b == 0 or _ == 0:
                if k == 0: a(f's_mov_b32 s{sT3}, s{sW1B}')
                else:
                    a(f's_mul_i32 s{sT3}, s{sW1S}, {k}'); a(f's_add_u32 s{sT3}, s{sT3}, s{sW1B}')
            r = 40 + 16 * b + 4 * k
            self.vm('w1', f'buffer_load_dwordx4 v[{r}:{r+3}], v{vo or vW1}, {sr(SW1)}, s{sT3} offen offset:{256*b} nt')

    def attention(self):
        a = self.a; cfg = self.cfg
        KF = cfg['KF']; P = cfg['PRIO']
        self.vmq = []
        a(f's_mov_b32 s{sSPIN}, s{sV}')
        a(f's_sub_u32 s{sV}, s{sV}, 4')
        a(f'v_and_b32 v34, 7, v{vL}')
        a(f'v_lshlrev_b32 v{vKO}, 8, v34')
        a(f'v_lshl_add_u32 v{vKO}, v32, 4, v{vKO}')
        a(f'v_bfe_u32 v34, v{vL}, 3, 1')
        a(f'v_lshl_add_u32 v{vKO}, v34, 6, v{vKO}')
        a(f's_lshr_b32 s{sT0}, s2, 2')
        a(f's_lshl_b32 s{sT0}, s{sT0}, 3')
        a(f's_add_u32 s{sT0}, s{sT0}, s{sV}')
        a(f's_lshl_b32 s{sT0}, s{sT0}, 13')
        a(f's_lshl_b32 s{sKB}, s{sKVH}, 24')
        a(f's_add_u32 s{sKB}, s{sKB}, s{sT0}')
        a(f'v_lshlrev_b32 v39, 4, v{vL}')
        for k in range(4): a(f'v_mov_b32 v{28+k}, -1')
        a(f's_sub_u32 s{sT1}, s2, 128')
        a(f's_lshl_b32 s{sT2}, s{sV}, 8')
        a(f's_add_u32 s{sT2}, s{sT2}, s{sT1}')
        a(f's_lshl_b32 s{sT1}, s{sT1}, 13')
        a('s_waitcnt lgkmcnt(0)')
        self.stamp(0)
        self.base(SWS, 30); self.base(SK, 6); self.base(SDB, 28)
        a(f's_cmp_ge_u32 s{sT2}, 16')
        a('s_cbranch_scc1 L_noearly')
        a('s_setprio 3')
        for k in range(8):
            if k == 4: a(f's_add_u32 s{sT1}, s{sT1}, 4096')
            a(f'buffer_store_dwordx4 v[28:31], v39, {sr(SWS)}, s{sT1} offen offset:{(k%4)*1024} sc1')
        a(f'v_lshlrev_b32 v38, 6, v{vL}')
        a('s_mov_b64 exec, 15')
        a('s_waitcnt vmcnt(0)')
        a(f'buffer_atomic_add v{vONE}, v38, {sr(SDB)}, 0 offen sc1')
        a('s_mov_b64 exec, -1')
        self.stamp(1)
        a('L_noearly:')
        self.kl(0, KF)
        a('s_barrier')
        self.base(SV, 8); self.base(SX, 4)
        a(f's_cmp_lg_u32 s{sISX}, 0')
        a(f's_cselect_b32 s{SW1}, s12, s16')
        a(f's_cselect_b32 s{SW1+1}, s13, s17')
        a(f's_mov_b32 s{SW1+2}, {7<<20}')
        a(f's_cselect_b32 s{SW1+2}, {8<<20}, s{SW1+2}')
        a(f's_and_b32 s{SW1+1}, s{SW1+1}, 0xffff')
        a(f's_mov_b32 s{SW1+3}, 0x20000')
        srd(a, SU, 18, 7 << 20); srd(a, SD, 20, 7 << 20); srd(a, SO, 26, 2048)
        a(f's_mov_b32 s{sWID}, s{sSPIN}')
        for par, reg in ((0, vV0), (1, vV1)):
            a(f'v_lshlrev_b32 v34, 1, v32')
            if par: a(f'v_add_u32 v34, 8, v34')
            a(f'v_xor_b32 v34, v34, v33')
            a(f'v_lshlrev_b32 v34, 4, v34')
            a(f'v_lshl_add_u32 v{reg}, v32, 8, v34')
        a(f's_lshl_b32 s{sRINGB}, s{sV}, 14')
        a(f's_setprio {P[0]}')
        self.kl(KF, cfg['NQ'], cfg['TD'])
        self.lds_arrive(6)
        self.kl(cfg['NQ'], 32, cfg['TD'])
        self.stamp(2)
        a(f's_setprio {P[1]}')
        self.vl(0, cfg['TDV'])
        self.vl(1, cfg['TDV'])
        a(f's_setprio {P[2]}')
        self.stamp(3)
        a(f's_lshl_b32 s{sV64}, s{sV}, 6')
        a(f's_mov_b32 s{sSEL}, 0x00ff00ff')
        a(f's_mov_b32 s{sSEL+1}, 0xff00ff00')
        a(f's_mul_i32 s{sOWN}, s2, {PAS}')
        a(f's_add_u32 s{sOWN}, s{sOWN}, {W_PA}')
        a(f's_lshl_b32 s{sPAO}, s{sV}, 9')
        a(f's_add_u32 s{sPAO}, s{sPAO}, s{sOWN}')
        a(f's_cmp_lg_u32 s{sISX}, 0')
        a('s_cbranch_scc1 L_base_x')
        a(f's_lshr_b32 s{sT0}, s{sJ}, 3')
        a(f's_lshl_b32 s{sT0}, s{sT0}, 3')
        a(f's_add_u32 s{sTEAM}, s{sT0}, s{sX}')
        a(f's_lshl_b32 s{sT0}, s{sRG}, 7')
        a(f's_lshl_b32 s{sT1}, s{sV}, 4')
        a(f's_add_u32 s{sT0}, s{sT0}, s{sT1}')
        a(f's_lshl_b32 s{sXO}, s{sT0}, 1')
        a(f's_mul_i32 s{sT0}, s{sT0}, 7168')
        a(f's_lshl_b32 s{sT1}, s{sTEAM}, 9')
        a(f's_add_u32 s{sW1B}, s{sT0}, s{sT1}')
        a(f's_mov_b32 s{sW1S}, {4*7168}')
        a(f's_lshl_b32 s{sT0}, s{sTEAM}, 19')
        a(f's_lshl_b32 s{sT1}, s{sV}, 16')
        a(f's_add_u32 s{sT0}, s{sT0}, s{sT1}')
        a(f's_lshl_b32 s{sT1}, s{sRG}, 8')
        a(f's_add_u32 s{sDNB}, s{sT0}, s{sT1}')
        a(f's_lshl_b32 s{sT0}, s{sTEAM}, 14')
        a(f's_add_u32 s{sTB}, s{sT0}, {W_PC}')
        a(f's_lshl_b32 s{sT1}, s{sRG}, 11')
        a(f's_add_u32 s{sDST}, s{sTB}, s{sT1}')
        a(f's_lshl_b32 s{sT0}, s{sRG}, 13')
        a(f's_add_u32 s{sGA}, s{sT0}, {W_PD}')
        a(f's_lshl_b32 s{sT1}, s{sTEAM}, 9')
        a(f's_add_u32 s{sDST2}, s{sGA}, s{sT1}')
        a(f's_mov_b32 s{sH}, 7168')
        a('s_branch L_base_j')
        a('L_base_x:')
        a(f's_mov_b32 s{sTEAM}, 0')
        a(f's_lshr_b32 s{sT0}, s{sX}, 2')
        a(f's_lshl_b32 s{sT0}, s{sT0}, 2')
        a(f's_lshr_b32 s{sT1}, s{sJ}, 2')
        a(f's_add_u32 s{sT0}, s{sT0}, s{sT1}')
        a(f's_lshl_b32 s{sT1}, s{sT0}, 9')
        a(f's_add_u32 s{sT1}, s{sT1}, s{sV64}')
        a(f's_mul_i32 s{sT2}, s{sKVH}, {PAS}')
        a(f's_add_u32 s{sT1}, s{sT1}, s{sT2}')
        a(f's_add_u32 s{sGA}, s{sT1}, {W_PA}')
        a(f's_lshl_b32 s{sT1}, s{sKVH}, 3')
        a(f's_add_u32 s{sT0}, s{sT0}, s{sT1}')
        a(f's_and_b32 s{sT2}, s{sJ}, 3')
        a(f's_lshl_b32 s{sT1}, s{sT0}, 9')
        a(f's_lshl_b32 s{sDST}, s{sT2}, 15')
        a(f's_add_u32 s{sDST}, s{sDST}, s{sT1}')
        a(f's_add_u32 s{sDST}, s{sDST}, {W_PB}')
        a(f's_lshl_b32 s{sT0}, s{sT0}, 18')
        a(f's_lshl_b32 s{sT1}, s{sV}, 15')
        a(f's_add_u32 s{sT0}, s{sT0}, s{sT1}')
        a(f's_lshl_b32 s{sT2}, s{sT2}, 9')
        a(f's_add_u32 s{sW1B}, s{sT0}, s{sT2}')
        a(f's_mov_b32 s{sW1S}, {4*2048}')
        a(f's_lshl_b32 s{sT0}, s{sX}, 8')
        a(f's_lshl_b32 s{sT1}, s{sV}, 5')
        a(f's_add_u32 s{sXO}, s{sT0}, s{sT1}')
        a(f's_lshl_b32 s{sT0}, s{sX}, 14')
        a(f's_add_u32 s{sT0}, s{sT0}, s{sV64}')
        a(f's_add_u32 s{sTB}, s{sT0}, {W_PB}')
        a(f's_mul_i32 s{sT0}, s{sX}, 768')
        a(f's_add_u32 s{sDST2}, s{sT0}, {W_XS}')
        a(f's_mov_b32 s{sDNB}, 0')
        a(f's_mov_b32 s{sH}, 2048')
        a('L_base_j:')
        a(f'v_and_b32 v24, 7, v{vL}')
        a(f'v_mul_u32_u24 v24, {QSTR}, v24')
        a(f'v_lshl_add_u32 v24, v32, 4, v24')
        a(f'v_add_u32 v24, {L_QB}, v24')
        a(f'v_bfe_u32 v26, v{vL}, 3, 1')
        a(f'v_lshl_add_u32 v25, v26, 6, v24')
        a(f'v_xor_b32 v26, 1, v26')
        a(f'v_lshl_add_u32 v24, v26, 6, v24')
        self.lds_wait(3, 4, sleep=2)
        self.stamp(4)
        for ty, reg in ((0, 25), (1, 24)):
            for hf in range(2):
                b = vBQ + 8 * ty + 4 * hf
                a(f'ds_read_b128 v[{b}:{b+3}], v{reg} offset:{128*hf}')
        a('s_waitcnt lgkmcnt(0)')
        for t in range(4):
            self.vm_wait(f'K{t}')
            for hf in range(2):
                for u in range(4):
                    kr = vK + 32 * t + 8 * u + 4 * hf
                    b = vBQ + 8 * (u & 1) + 4 * hf
                    d = (vD1 if t & 1 else vD0) + 4 * u
                    c = '0' if hf == 0 else f'v[{d}:{d+3}]'
                    a(f'v_mfma_f32_16x16x32_bf16 v[{d}:{d+3}], v[{kr}:{kr+3}], v[{b}:{b+3}], {c}')
            if t > 0: self.sfix(t - 1)
        self.sfix(3)
        S = list(range(vS, vS + 16))
        a(f'v_max3_f32 v88, v{S[0]}, v{S[1]}, v{S[2]}')
        for k in range(3, 15, 2): a(f'v_max3_f32 v88, v88, v{S[k]}, v{S[k+1]}')
        a(f'v_max_f32 v88, v88, v{S[15]}')
        self.allred('v_max_f32', [88], (3, 4, 5), [89])
        for r in S: a(f'v_sub_f32 v{r}, v{r}, v88')
        for r in S: a(f'v_mul_f32 v{r}, {LOG2E}, v{r}')
        for r in S: a(f'v_exp_f32 v{r}, v{r}')
        a(f'v_add_f32 v89, v{S[0]}, v{S[1]}')
        for r in S[2:]: a(f'v_add_f32 v89, v89, v{r}')
        self.allred('v_add_f32', [89], (3, 4, 5), [90])
        a(f'v_lshlrev_b32 v{vRED}, 3, v{vL}')
        a(f's_add_u32 s{sT0}, s{sV64}, {L_ML}')
        a(f'v_add_u32 v90, s{sT0}, v{vRED}')
        a('s_mov_b64 exec, 0xff')
        a('ds_write_b64 v90, v[88:89]')
        a('s_waitcnt lgkmcnt(0)')
        a('s_mov_b64 exec, 1')
        a(f'ds_add_rtn_u32 v91, v{vCNT}, v{vONE} offset:16')
        a('s_mov_b64 exec, -1')
        for t in range(4):
            a(f'v_cvt_pk_bf16_f32 v{vP+4*t}, v{vS+4*t}, v{vS+4*t+1}')
            a(f'v_cvt_pk_bf16_f32 v{vP+4*t+1}, v{vS+4*t+2}, v{vS+4*t+3}')
        for t in range(4):
            a(f'v_mov_b32_dpp v{vP+4*t+2}, v{vP+4*t} row_ror:8 {DPP}')
            a(f'v_mov_b32_dpp v{vP+4*t+3}, v{vP+4*t+1} row_ror:8 {DPP}')
        a(f'v_lshrrev_b32 v100, 4, v{vL}')
        a(f'v_and_b32 v101, 15, v{vL}')
        a(f'v_and_b32 v102, 3, v{vL}')
        a(f'v_lshrrev_b32 v103, 2, v{vL}')
        a(f'v_and_b32 v104, 3, v103')
        a(f'v_and_b32 v105, 1, v100')
        a(f'v_lshl_add_u32 v104, v105, 2, v104')
        a(f'v_lshrrev_b32 v105, 1, v100')
        a(f'v_lshl_add_u32 v105, v105, 4, v104')
        a(f'v_lshlrev_b32 v105, 8, v105')
        a(f'v_lshl_add_u32 v105, v102, 3, v105')
        a(f'v_add_u32 v105, s{sRINGB}, v105')
        for d in range(8):
            a(f'v_xor_b32 v106, {d}, v104')
            a(f'v_lshl_add_u32 v{vTR+d}, v106, 5, v105')
        a(f'v_lshlrev_b32 v106, 4, v101')
        a(f'v_lshl_add_u32 v{vW2D}, v100, 11, v106')
        a(f'v_mad_u32_u24 v{vW1}, v100, s{sH}, v106')
        a(f's_cmp_ge_u32 s{sTEAM}, 14')
        a(f's_cselect_b32 s{sT1}, {OOB}, 0')
        a(f'v_or_b32 v{vW1}, s{sT1}, v{vW1}')
        a(f's_cmp_eq_u32 s{sISX}, 0')
        a(f's_cselect_b32 s{sT1}, {OOB}, 0')
        a(f'v_or_b32 v{vW1X}, s{sT1}, v{vW1}')
        a(f'v_lshl_add_u32 v{vC4G}, v102, 2, v100')
        a(f'v_lshlrev_b32 v{vC4G}, 1, v{vC4G}')
        a('s_waitcnt lgkmcnt(0)')
        a(f'v_readfirstlane_b32 s{sT0}, v91')
        a(f's_cmp_lg_u32 s{sT0}, 7')
        a('s_cbranch_scc1 L_notlast')
        a(f'v_add_u32 v90, {L_ML}, v{vRED}')
        a('ds_read_b64 v[92:93], v90')
        a(f'v_lshrrev_b32 v96, 3, v{vL}')
        a(f'v_and_b32 v97, 7, v{vL}')
        a(f'v_lshlrev_b32 v97, 5, v97')
        a(f'v_lshl_add_u32 v96, v96, 2, v97')
        a(f'v_add_u32 v96, {L_F}, v96')
        a('s_waitcnt lgkmcnt(0)')
        a('v_mov_b32 v94, v92')
        self.allred('v_max_f32', [94], (3, 4, 5), [95])
        a('v_sub_f32 v92, v92, v94')
        a(f'v_mul_f32 v92, {LOG2E}, v92')
        a('v_exp_f32 v92, v92')
        a('v_mul_f32 v95, v93, v92')
        a('ds_write_b32 v96, v92')
        self.allred('v_add_f32', [95], (3, 4, 5), [93])
        a('v_min_u32 v94, -2, v94')
        a('v_min_u32 v95, -2, v95')
        a(f's_add_u32 s{sT0}, s{sOWN}, 4096')
        a('s_mov_b64 exec, 0xff')
        a('s_setprio 3')
        a(f'buffer_store_dwordx2 v[94:95], v{vRED}, {sr(SWS)}, s{sT0} offen sc1')
        a(f's_setprio {P[2]}')
        a('s_mov_b64 exec, -1')
        a('s_waitcnt lgkmcnt(0)')
        a('L_notlast:')
        self.stamp(6)
        aOWR, aORD0, aORD1, aF, aMOD, aW = 72, 73, 74, 75, 76, 77
        for t in range(4):
            self.vm_wait(f'V{t}')
            so = (t % 2) * 8192
            def rd(d):
                f = vVF + 4 * (d % 4)
                a(f'ds_read_b64_tr_b16 v[{f}:{f+1}], v{vTR+d} offset:{so}')
                a(f'ds_read_b64_tr_b16 v[{f+2}:{f+3}], v{vTR+d} offset:{so+2048}')
            for d in range(4): rd(d)
            for d in range(8):
                f = vVF + 4 * (d % 4)
                a(f's_waitcnt lgkmcnt({6 if d < 5 else 2*(7-d)})')
                c = '0' if t == 0 else f'v[{vO+4*d}:{vO+4*d+3}]'
                a(f'v_mfma_f32_16x16x32_bf16 v[{vO+4*d}:{vO+4*d+3}], v[{f}:{f+3}], v[{vP+4*t}:{vP+4*t+3}], {c}')
                if d < 4: rd(d + 4)
            if t == 0:
                self.vm('xf', f'buffer_load_ushort v{vXF}, v{vC4G}, {sr(SX)}, s{sXO} offen')
                self.w1(cfg['W']['preV2'], vW1X)
                self.vl(2)
            if t == 1:
                self.w1(cfg['W']['preV3'], vW1X)
                self.vl(3)
                self.lds_arrive(7)
                a(f's_setprio {P[3]}')
                self.w1(8, vW1X)
                a('s_setprio 3')
                self.stamp(7)
            if t == 2:
                a(f'v_lshrrev_b32 v78, 4, v{vL}')
                a(f'v_and_b32 v79, 15, v{vL}')
                self.gemv_consts(78, 79, None, 72)
                a(f'v_mul_u32_u24 v{aOWR}, {OSTR}, v79')
                a(f'v_lshl_add_u32 v{aOWR}, v78, 4, v{aOWR}')
                a(f'v_add_u32 v{aOWR}, s{sRINGB}, v{aOWR}')
                a(f's_mul_i32 s{sT0}, s{sV}, {OSTR}')
                a(f'v_add_u32 v{aORD0}, s{sT0}, v{vRED}')
                a(f'v_add_u32 v{aORD1}, {4*RING}, v{aORD0}')
                a(f's_lshl_b32 s{sT0}, s{sV}, 5')
                a(f's_add_u32 s{sT0}, s{sT0}, {L_F}')
                a(f'v_mov_b32 v{aF}, s{sT0}')
                a(f'v_and_b32 v38, 3, v{vL}')
                a(f'v_lshlrev_b32 v38, 4, v38')
                a(f'v_lshrrev_b32 v39, 2, v{vL}')
                a(f's_mov_b32 s{sT0}, {4*PAS}')
                a(f'v_mad_u32_u24 v{vGA4}, v39, s{sT0}, v38')
                a(f'v_lshl_add_u32 v{vG512}, v39, 9, v38')
                a(f'v_lshrrev_b32 v78, 3, v{vL}')
                a(f'v_and_b32 v79, 7, v{vL}')
                a(f'v_lshlrev_b32 v79, 3, v79')
                a(f's_movk_i32 s{sT0}, 768')
                a(f'v_mad_u32_u24 v{vSTG}, v78, s{sT0}, v79')
                a(f'v_and_b32 v79, 1, v39')
                a(f'v_lshl_add_u32 v79, v79, 10, v38')
                a(f'v_lshl_add_u32 v{vCG}, v78, 11, v79')
                a(f'v_lshlrev_b32 v{vXF}, 16, v{vXF}')
                a(f's_add_u32 s{sT0}, s{sV64}, {L_MOD}')
                a(f'v_lshl_add_u32 v{aMOD}, v{vC4G}, 1, s{sT0}')
                a(f'v_lshlrev_b32 v{aW}, 2, v{vL}')
                a(f'v_add_u32 v{aW}, {L_W}, v{aW}')
        self.stamp(8)
        a('s_mov_b32 exec_lo, 0x00ff00ff')
        a('s_mov_b32 exec_hi, 0x00ff00ff')
        for d in range(8):
            a(f'ds_write_b128 v{aOWR}, v[{vO+4*d}:{vO+4*d+3}] offset:{64*d}')
        a('s_mov_b64 exec, -1')
        self.wnext = 0
        xq = list(self.vmq)
        if cfg['W']['preBar']:
            a(f's_cmp_lg_u32 s{sISX}, 0')
            a('s_cbranch_scc1 L_nopre')
            a(f's_setprio {P[3]}')
            self.w1(cfg['W']['preBar'])
            a('s_setprio 3')
            a('L_nopre:')
        a('s_waitcnt lgkmcnt(0)')
        a('s_barrier')
        a(f'ds_read_b128 v[104:107], v{aF}')
        a(f'ds_read_b128 v[108:111], v{aF} offset:16')
        for k in range(4):
            bs = aORD0 if k < 2 else aORD1
            kk = k % 2
            a(f'ds_read2st64_b64 v[{88+4*k}:{91+4*k}], v{bs} offset0:{64*kk} offset1:{64*kk+32}')
        a(f'ds_read_b32 v{vWW}, v{aW}')
        for k, r in enumerate((vM0, vM1, vM2)):
            a(f'ds_read_b32 v{r}, v{aMOD} offset:{512*(k+1)}')
        def pk(op, dst, j):
            fp = 104 + (j & ~1); x = 88 + 2 * j
            if op == 'mul':
                sel = 'op_sel:[0,1] op_sel_hi:[1,1]' if j & 1 else 'op_sel:[0,0] op_sel_hi:[1,0]'
                a(f'v_pk_mul_f32 v[{dst}:{dst+1}], v[{x}:{x+1}], v[{fp}:{fp+1}] {sel}')
            else:
                sel = 'op_sel:[0,1,0] op_sel_hi:[1,1,1]' if j & 1 else 'op_sel:[0,0,0] op_sel_hi:[1,0,1]'
                a(f'v_pk_fma_f32 v[{dst}:{dst+1}], v[{x}:{x+1}], v[{fp}:{fp+1}], v[{dst}:{dst+1}] {sel}')
        a('s_waitcnt lgkmcnt(6)')
        pk('mul', 80, 0); pk('mul', 82, 1); pk('fma', 80, 2); pk('fma', 82, 3)
        a('s_waitcnt lgkmcnt(4)')
        pk('fma', 80, 4); pk('fma', 82, 5); pk('fma', 80, 6); pk('fma', 82, 7)
        a('v_pk_add_f32 v[80:81], v[80:81], v[82:83]')
        a('v_min_u32 v80, -2, v80')
        a('v_min_u32 v81, -2, v81')
        self.vm('st', f'buffer_store_dwordx2 v[80:81], v{vRED}, {sr(SWS)}, s{sPAO} offen sc1')
        self.stamp(9)
        a('s_setprio 0')
        a('s_waitcnt lgkmcnt(0)')
        a(f's_cmp_eq_u32 s{sISX}, 0')
        a('s_cbranch_scc1 L_tail_y')
        save = list(self.vmq)
        self.vmq = xq + ['st']
        G, AF, AC, M = 88, 104, 120, 128
        loads = []
        for n in range(4):
            if n: loads.append(f's_add_u32 s{sT1}, s{sGA}, {64*n*PAS}')
            loads.append(f'buffer_load_dwordx4 v[{G+4*n}:{G+3+4*n}], v{vGA4}, {sr(SWS)}, s{sT1 if n else sGA} offen sc1')
        self.delay('A')
        self.issue('A', loads)
        self.validate('A', loads, range(G, G + 16), sleep=cfg['SLA'], rec=0)
        self.stamp(10)
        for k in range(4): a(f'v_mul_f32_dpp v{G+k}, v{vWW}, v{G+k} quad_perm:[0,0,0,0] {DPP}')
        for n in range(1, 4):
            for k in range(4): a(f'v_fmac_f32_dpp v{G+k}, v{vWW}, v{G+4*n+k} quad_perm:[{n},{n},{n},{n}] {DPP}')
        self.tred(G, M)
        a(f'v_cvt_pk_bf16_f32 v{M}, v{M}, v{M}')
        self.gemv(M, [(40, AC), (56, AC + 4)], AF, wait='w1')
        self.out_write([AC, AC + 4], L_WO)
        a('s_barrier')
        self.red_pub(0, 2, L_WO, sDST, 16384, 8, AF)
        a(f's_cmp_lg_u32 s{sJ}, 15')
        a('s_cbranch_scc1 L_fin')
        a(f's_add_u32 s{sT1}, s{sTB}, 8192')
        loads = [f'buffer_load_dwordx4 v[{G}:{G+3}], v{vG512}, {sr(SWS)}, s{sTB} offen sc1',
                 f'buffer_load_dwordx4 v[{G+4}:{G+7}], v{vG512}, {sr(SWS)}, s{sT1} offen sc1']
        self.delay('B')
        self.issue('B', loads)
        a(f'v_subrev_u32 v{aMOD}, {L_MOD - L_XS}, v{aMOD}')
        a(f's_lshl_b32 s{sT0}, s{sV}, 3')
        a(f's_add_u32 s{sT0}, s{sT0}, {L_XS + 512}')
        a(f'v_mov_b32 v{aW}, s{sT0}')
        a(f's_lshl_b32 s{sT0}, s{sV}, 9')
        a(f's_add_u32 s{sDST2}, s{sDST2}, s{sT0}')
        a(f's_add_u32 s{sT0}, s{sT0}, {L_XS}')
        a(f'v_add_u32 v{aF}, s{sT0}, v{vRED}')
        self.validate('B', loads, range(G, G + 8), sleep=cfg['SL'], rec=1)
        self.stamp(11)
        for k in range(4): a(f'v_add_f32 v{G+k}, v{G+k}, v{G+4+k}')
        self.tred(G, M)
        self.rnd(M, M)
        a(f'v_mul_f32 v{M}, v{M}, v{vM0}')
        self.rnd(M, M)
        a(f'v_add_f32 v{M}, v{M}, v{vXF}')
        self.rnd(vX2, M)
        a(f'ds_write_b32 v{aMOD}, v{vX2}')
        a(f'v_readfirstlane_b32 s{sT0}, v{vX2}')
        a(f'v_subrev_f32 v{M+1}, s{sT0}, v{vX2}')
        a(f'v_mul_f32 v{M+2}, v{M+1}, v{M+1}')
        self.allred('v_add_f32', [M + 1, M + 2], (0, 1, 4, 5), [M + 3, M + 4])
        a(f'v_mul_f32 v{M+3}, 0x3d800000, v{M+1}')
        a(f'v_fma_f32 v{M+5}, -v{M+1}, v{M+3}, v{M+2}')
        a(f'v_add_f32 v{M+4}, s{sT0}, v{M+3}')
        a(f'v_min_u32 v{M+4}, -2, v{M+4}')
        a(f'v_min_u32 v{M+5}, -2, v{M+5}')
        a(f'ds_write_b64 v{aW}, v[{M+4}:{M+5}]')
        a('s_waitcnt lgkmcnt(0)')
        a('s_barrier')
        a(f's_cmp_ge_u32 s{sV}, 2')
        a('s_cbranch_scc1 L_fin')
        a(f's_cmp_eq_u32 s{sV}, 0')
        a(f's_cselect_b32 exec_lo, -1, 0xff')
        a(f's_cselect_b32 exec_hi, -1, 0')
        a(f'ds_read_b64 v[{M+4}:{M+5}], v{aF}')
        a('s_waitcnt lgkmcnt(0)')
        a(f'buffer_store_dwordx2 v[{M+4}:{M+5}], v{vRED}, {sr(SWS)}, s{sDST2} offen sc1')
        a('s_mov_b64 exec, -1')
        self.stamp(12)
        a('s_branch L_fin')
        a('L_tail_y:')
        self.vmq = save
        a(f's_cmp_ge_u32 s{sTEAM}, 14')
        a('s_cbranch_scc1 L_fin')
        G, AF, AC, M = 12, 88, 72, 72
        vWD = 104
        self.w1(8)
        for k in range(4):
            if k == 0: a(f's_mov_b32 s{sT3}, s{sW1B}')
            else: a(f's_add_u32 s{sT3}, s{sW1B}, {4*k*7168}')
            for b in range(2):
                r = 136 + 16 * b + 4 * k
                self.vm('w1', f'buffer_load_dwordx4 v[{r}:{r+3}], v{vW1}, {sr(SU)}, s{sT3} offen offset:{256*b} nt')
        def dn(k0, k1):
            for k in range(k0, k1):
                a(f's_add_u32 s{sT3}, s{sDNB}, {4*k*2048}')
                self.vm('dn', f'buffer_load_dwordx4 v[{vWD+4*k}:{vWD+4*k+3}], v{vW2D}, {sr(SD)}, s{sT3} offen nt')
        dn(0, cfg['W']['dn0'])
        a(f's_mul_i32 s{sT1}, s{sRG}, 768')
        a(f's_add_u32 s{sT1}, s{sT1}, s{sV64}')
        a(f's_add_u32 s{sT1}, s{sT1}, {W_XS}')
        a(f's_mov_b32 s{sT0}, {W_XS + 512}')
        a(f'v_lshlrev_b32 v38, 1, v{vC4G}')
        loads = [f'buffer_load_dwordx2 v[{G}:{G+1}], v{vSTG}, {sr(SWS)}, s{sT0} offen sc1',
                 f'buffer_load_dword v{vX2}, v38, {sr(SWS)}, s{sT1} offen sc1']
        if cfg['YW']: self.vm_wait('w1')
        self.delay('S')
        self.issue('S', loads)
        dn(cfg['W']['dn0'], 8)
        self.stamp(10)
        self.validate('S', loads, (G, G + 1, vX2), sleep=cfg['SLS'], rec=2)
        self.stamp(12)
        a(f'v_readfirstlane_b32 s{sT0}, v{G}')
        a(f'v_subrev_f32 v{G+2}, s{sT0}, v{G}')
        a(f'v_mul_f32 v{G+3}, 0x41800000, v{G+2}')
        a(f'v_fmac_f32 v{G+1}, v{G+3}, v{G+2}')
        self.allred('v_add_f32', [G + 2, G + 1], (0, 1, 3, 2, 4, 5), [G + 4, G + 5])
        a(f'v_mul_f32 v{G+2}, 0x3c800000, v{G+2}')
        a(f'v_mul_f32 v{G+1}, 0x3a800000, v{G+1}')
        a(f'v_fma_f32 v{G+1}, -v{G+2}, v{G+2}, v{G+1}')
        a(f'v_add_f32 v{G+2}, s{sT0}, v{G+2}')
        self.ln_stats(G + 2, G + 1)
        self.ln_apply(G + 4, vX2, G + 2, G + 1, vM1, vM0, G + 3)
        self.gemv(G + 4, [(40, AC), (56, AC + 4), (136, AC + 8), (152, AC + 12)], AF, wait='w1')
        self.out_write([AC, AC + 4, AC + 8, AC + 12], L_GU)
        a('s_barrier')
        self.red_pub(0, 4, L_GU, sDST, 512, 8, AF)
        a(f's_lshl_b32 s{sT0}, s{sV}, 7')
        a(f's_add_u32 s{sT0}, s{sT0}, s{sTB}')
        loads = [f'buffer_load_dwordx4 v[{G+4*hh}:{G+4*hh+3}], v{vCG}, {sr(SWS)}, s{sT0} offen offset:{64*hh} sc1' for hh in range(2)]
        self.delay('C')
        self.issue('C', loads)
        a(f's_mov_b32 s{sSEL}, 0xf0f0f0f0')
        a(f's_mov_b32 s{sSEL+1}, 0xf0f0f0f0')
        self.validate('C', loads, range(G, G + 8), sleep=cfg['SL'], rec=3)
        self.stamp(13)
        self.tred(G, M, bits=(3,))
        self.tred(G + 4, M + 1, bits=(3,))
        self.rnd(M, M); self.rnd(M + 1, M + 1)
        a(f'v_mov_b32_dpp v{M+2}, v{M} row_ror:4 {DPP}')
        a(f'v_mov_b32_dpp v{M+3}, v{M+1} row_ror:4 {DPP}')
        a(f'v_cndmask_b32 v{M+4}, v{M}, v{M+3}, s[{sSEL}:{sSEL+1}]')
        a(f'v_cndmask_b32 v{M+5}, v{M+2}, v{M+1}, s[{sSEL}:{sSEL+1}]')
        self.silu(M + 4, M + 4, M + 6)
        self.rnd(M + 4, M + 4)
        a(f'v_mul_f32 v{M+4}, v{M+4}, v{M+5}')
        a(f'v_cvt_pk_bf16_f32 v{M+4}, v{M+4}, v{M+4}')
        a(f'v_mov_b32_dpp v{M+5}, v{M+4} row_ror:4 {DPP}')
        a(f'v_cndmask_b32 v{G}, v{M+4}, v{M+5}, s[{sSEL}:{sSEL+1}]')
        a(f'v_cndmask_b32 v{G+1}, v{M+5}, v{M+4}, s[{sSEL}:{sSEL+1}]')
        for n in range(4): self.afrag(AF + 4 * n, G, n)
        for n in range(4): self.afrag(40 + 4 * n, G + 1, n)
        self.vm_wait('dn')
        for n in range(4):
            self.mf(AC + 12, AF, vWD, n, n == 0)
            self.mf(56, 40, vWD + 16, n, n == 0)
        for k in range(4): a(f'v_add_f32 v{56+k}, v{56+k}, v{AC+12+k}')
        self.out_write([56], L_DN)
        a('s_barrier')
        self.red_pub(0, 1, L_DN, sDST2, 0, 8, AF)
        a(f's_cmp_lg_u32 s{sTEAM}, s{sRG}')
        a('s_cbranch_scc1 L_fin')
        a(f's_add_u32 s{sT0}, s{sGA}, s{sV64}')
        a(f'v_cmp_lt_u32 vcc, 55, v{vL}')
        a(f'v_mov_b32 v38, {OOB}')
        a(f'v_cndmask_b32 v38, v{vG512}, v38, vcc')
        loads = [f'buffer_load_dwordx4 v[{G}:{G+3}], v38, {sr(SWS)}, s{sT0} offen sc1']
        self.delay('D')
        self.issue('D', loads)
        self.validate('D', loads, range(G, G + 4), sleep=cfg['SL'], rec=4)
        self.stamp(14)
        self.tred(G, M)
        self.rnd(M, M)
        a(f'v_mul_f32 v{M}, v{M}, v{vM2}')
        self.rnd(M, M)
        a(f'v_add_f32 v{M}, v{M}, v{vX2}')
        a(f'v_cvt_pk_bf16_f32 v{M}, v{M}, v{M}')
        a('s_mov_b32 exec_lo, 0x000f000f')
        a('s_mov_b32 exec_hi, 0x000f000f')
        a(f'buffer_store_short v{M}, v{vC4G}, {sr(SO)}, s{sXO} offen')
        a('s_mov_b64 exec, -1')
        a('L_fin:')
        self.finish()


if __name__ == '__main__':
    out = sys.argv[1]
    stamps = sys.argv[2] if len(sys.argv) > 2 and sys.argv[2] != '-' else False
    cfg = json.loads(sys.argv[3]) if len(sys.argv) > 3 else None
    open(out, 'w').write(Gen(stamps=stamps, cfg=cfg).build())
```

```python
import sys, json
from asmlib import *
from hazard import pad

HDR = open('adaLN_cond__gqa_block_cached__swiglu_ffn__decode.s.ref').read().split('\n')
HDR = [l for l in HDR if l.startswith(';') and '@launch' not in l]

E_PM0, E_PQ, LB = 0, 65536, 131072
PAS = 4352
W_PA = LB
W_M12 = W_PA + 256 * PAS
W_PB = W_M12 + 65536
W_XS = W_PB + 131072
W_PC = W_XS + 8192
W_PD = W_PC + 229376
NCLR = 16
CLRW = 3200
assert W_PD + 65536 <= LB + 512 * CLRW
RING = 16384
L_SCR = 131072
L_M, L_Q, L_QB = L_SCR, L_SCR + 2048, L_SCR + 4096
L_ML, L_F, L_CNT, L_W, L_XS, L_MOD = L_SCR + 6400, L_SCR + 6912, L_SCR + 7168, L_SCR + 7424, L_SCR + 7680, L_SCR + 8448
LDS_BYTES = L_MOD + 2048
L_WO, L_GU, L_DN = 8192, RING + 8192, 3 * RING
OSTR, QSTR = 528, 272
LOG2E, SCALE, EPS = 0x3fb8aa3b, 0x3db504f3, 0x3727c5ac
SPIN = 60000
DPP = 'row_mask:0xf bank_mask:0xf'
NVGPR = 168
OOB = 0x20000000

SK, SV, SWQ, SW1, SU, SD, SM, SWS, SX, SC, SO, SDB = 32, 36, 40, 44, 52, 56, 60, 64, 68, 72, 76, 80
def sr(x): return f's[{x}:{x+3}]'
sV = 3
sKVH, sJ, sKB, sX, sRG, sISX, sTEAM, sSPIN = 84, 85, 86, 87, 88, 89, 90, 91
sT0, sT1, sT2, sT3 = 92, 93, 94, 95
sSEL, sE, sTB, sV64 = 96, 98, 100, 101
sB0, sB1, sWID = 14, 15, 23
sRINGB, sH, sW1B, sW1S, sDNB, sXO, sGA, sDST, sPAO = 4, 5, 6, 7, 8, 9, 10, 11, 48
sDST2, sOWN = 49, 50

vT0, vL, vT1, vCNT, vONE, vST = 0, 1, 2, 5, 6, 7
vKO, vV0, vV1 = 2, 3, 4
vK, vBQ, vD0, vD1, vS = 40, 8, 24, 40, 56
vMASK, vTR = 8, 12
vW1X = 23
vGA4, vG512, vW1, vW2D, vRED, vOW, vC4G = 20, 21, 22, 24, 25, 26, 27
vXF, vM0, vM1, vM2, vX2, vSTG, vCG, vWW = 28, 29, 30, 31, 33, 35, 36, 37
vP, vO, vVF = 72, 88, 120


class Gen:
    def __init__(self, stamps=False, cfg=None):
        self.a = Asm()
        self.stamps = stamps
        self.nlab = 0
        self.cfg = dict(KF=2, TD=3, TDV=63, SLH=16, SLC=8, SL=1, SLA=2, SLS=2, NQ0=4, NQ=28, NMOD=4, NML=8, YW=1, PRIO=[3, 2, 1, 0],
                        W={'preV2': 0, 'preV3': 8, 'preBar': 0, 'dn0': 0},
                        D={'H1': 0, 'A': 0, 'B': 8, 'S': 0, 'C': 12, 'D': 12})
        if cfg:
            cfg = dict(cfg)
            for kk in ('D', 'W'):
                if kk in cfg: self.cfg[kk].update(cfg.pop(kk))
            self.cfg.update(cfg)
        self.vmq = []; self.wnext = 0

    def lab(self, s):
        self.nlab += 1
        return f'L_{s}_{self.nlab}'

    def stamp(self, k):
        if not self.stamps: return
        a = self.a
        a(f's_memrealtime s[{sE}:{sE+1}]')
        a('s_waitcnt lgkmcnt(0)')
        a(f'v_writelane_b32 v{vST}, s{sE}, {k}')

    def rnd(self, dst, src):
        a = self.a
        a(f'v_cvt_pk_bf16_f32 v{dst}, v{src}, v{src}')
        a(f'v_and_b32 v{dst}, 0xffff0000, v{dst}')

    def allred(self, op, regs, bits, tmps):
        a = self.a
        for b in bits:
            if b in (0, 1, 2, 3):
                mod = {0: 'quad_perm:[1,0,3,2]', 1: 'quad_perm:[2,3,0,1]', 2: 'row_ror:4', 3: 'row_ror:8'}[b]
                for r in regs: a(f'{op}_dpp v{r}, v{r}, v{r} {mod} {DPP}')
            else:
                ins = 'v_permlane16_swap_b32' if b == 4 else 'v_permlane32_swap_b32'
                for r, t in zip(regs, tmps): a(f'v_mov_b32 v{t}, v{r}')
                for r, t in zip(regs, tmps): a(f'{ins} v{t}, v{r}')
                for r, t in zip(regs, tmps): a(f'{op} v{r}, v{r}, v{t}')

    def tred(self, x, y, bits=(3, 2)):
        a = self.a
        a(f'v_permlane32_swap_b32 v{x}, v{x+2}')
        a(f'v_permlane32_swap_b32 v{x+1}, v{x+3}')
        a(f'v_add_f32 v{x}, v{x}, v{x+2}')
        a(f'v_add_f32 v{x+1}, v{x+1}, v{x+3}')
        a(f'v_permlane16_swap_b32 v{x}, v{x+1}')
        a(f'v_add_f32 v{y}, v{x}, v{x+1}')
        self.allred('v_add_f32', [y], bits, [])

    def afrag(self, dst, xdup, n):
        for d in range(4):
            self.a(f'v_and_b32_dpp v{dst+d}, v{xdup}, v{vMASK+d} quad_perm:[{n},{n},{n},{n}] {DPP}')

    def mf(self, acc, ab, wb, n, first):
        c = '0' if first else f'v[{acc}:{acc+3}]'
        self.a(f'v_mfma_f32_16x16x32_bf16 v[{acc}:{acc+3}], v[{ab+4*n}:{ab+4*n+3}], v[{wb+4*n}:{wb+4*n+3}], {c}')

    def gemv(self, xdup, mats, abase, wait=None):
        for n in range(4): self.afrag(abase + 4 * n, xdup, n)
        if wait: self.vm_wait(wait)
        for n in range(4):
            for wb, acc in mats: self.mf(acc, abase, wb, n, n == 0)

    def out_write(self, accs, lbase):
        a = self.a
        a('s_mov_b32 exec_hi, 0')
        for b, acc in enumerate(accs):
            off = lbase + 4096 * b
            if off < 65536:
                a(f'ds_write_b128 v{vOW}, v[{acc}:{acc+3}] offset:{off}')
            else:
                a(f'v_add_u32 v{vT1}, {off}, v{vOW}')
                a(f'ds_write_b128 v{vT1}, v[{acc}:{acc+3}]')
        a('s_mov_b64 exec, -1')
        a('s_waitcnt lgkmcnt(0)')

    def silu(self, dst, src, t):
        a = self.a
        a(f's_mov_b32 s{sT2}, 0xbfb8aa3b')
        a(f'v_max_f32 v{t+2}, 0xc2b00000, v{src}')
        a(f'v_min_f32 v{t+2}, 0x42c80000, v{t+2}')
        a(f'v_mul_f32 v{t}, s{sT2}, v{t+2}')
        a(f'v_fma_f32 v{t+1}, v{t+2}, s{sT2}, -v{t}')
        a(f'v_fmac_f32 v{t+1}, 0xb2a57060, v{t+2}')
        a(f'v_exp_f32 v{t}, v{t}')
        a(f'v_mul_f32 v{t+1}, 0x3f317218, v{t+1}')
        a(f'v_fmac_f32 v{t}, v{t}, v{t+1}')
        a(f'v_add_f32 v{t}, 1.0, v{t}')
        a(f'v_rcp_f32 v{t+1}, v{t}')
        a(f'v_fma_f32 v{t+2}, -v{t}, v{t+1}, 1.0')
        a(f'v_fmac_f32 v{t+1}, v{t+2}, v{t+1}')
        a(f'v_mul_f32 v{t+2}, v{src}, v{t+1}')
        a(f'v_fma_f32 v{t+3}, -v{t}, v{t+2}, v{src}')
        a(f'v_fmac_f32 v{t+2}, v{t+3}, v{t+1}')
        a(f'v_fma_f32 v{t+3}, -v{t}, v{t+2}, v{src}')
        a(f'v_fma_f32 v{dst}, v{t+3}, v{t+1}, v{t+2}')

    def ln_stats(self, mean, var):
        a = self.a
        self.rnd(var, var)
        a(f'v_add_f32 v{var}, {EPS}, v{var}')
        self.rnd(var, var)
        a(f'v_sqrt_f32 v{var}, v{var}')
        self.rnd(mean, mean)
        self.rnd(var, var)
        a(f'v_rcp_f32 v{var}, v{var}')

    def ln_apply(self, dst, x, mean, rsd, c1, sh, t):
        a = self.a
        a(f'v_sub_f32 v{t}, v{x}, v{mean}')
        self.rnd(t, t)
        a(f'v_mul_f32 v{t}, v{t}, v{rsd}')
        self.rnd(t, t)
        a(f'v_mul_f32 v{t}, v{t}, v{c1}')
        self.rnd(t, t)
        a(f'v_add_f32 v{t}, v{t}, v{sh}')
        a(f'v_cvt_pk_bf16_f32 v{dst}, v{t}, v{t}')

    def vm(self, tag, line):
        self.a(line); self.vmq.append(tag)

    def vm_wait(self, tag):
        idx = [i for i, t in enumerate(self.vmq) if t == tag]
        if not idx: return
        n = len(self.vmq) - 1 - idx[-1]
        self.a(f's_waitcnt vmcnt({min(n,63)})')
        self.vmq = self.vmq[idx[-1] + 1:]

    def lds_arrive(self, k):
        a = self.a
        a('s_waitcnt lgkmcnt(0)')
        a('s_mov_b64 exec, 1')
        a(f'ds_add_u32 v{vCNT}, v{vONE} offset:{4*k}')
        a('s_mov_b64 exec, -1')

    def lds_wait(self, k, n, sleep=0):
        a = self.a
        lr, lo = self.lab('lw'), self.lab('lwok')
        a(f's_mov_b32 s{sSPIN}, 0')
        a(f'{lr}:')
        a(f'ds_read_b32 v{vT0}, v{vCNT} offset:{4*k}')
        a('s_waitcnt lgkmcnt(0)')
        a(f'v_cmp_gt_u32 vcc, {n}, v{vT0}')
        a(f's_cbranch_vccz {lo}')
        a(f's_add_u32 s{sSPIN}, s{sSPIN}, 1')
        a(f's_cmp_gt_u32 s{sSPIN}, {SPIN*16}')
        a('s_cbranch_scc1 L_end')
        if sleep: a(f's_sleep {sleep}')
        a(f's_branch {lr}')
        a(f'{lo}:')

    def check(self, chk):
        a = self.a
        c = list(chk)
        if len(c) == 2:
            a(f'v_max_u32 v{vT0}, v{c[0]}, v{c[1]}'); c = []
        else:
            a(f'v_max3_u32 v{vT0}, v{c[0]}, v{c[1]}, v{c[2]}'); c = c[3:]
        while len(c) >= 2:
            a(f'v_max3_u32 v{vT0}, v{vT0}, v{c[0]}, v{c[1]}'); c = c[2:]
        if c: a(f'v_max_u32 v{vT0}, v{vT0}, v{c[0]}')
        a(f'v_cmp_eq_u32 vcc, -1, v{vT0}')

    def issue(self, tag, loads):
        for l in loads:
            if l.startswith('buffer_'): self.vm(tag, l)
            else: self.a(l)

    def validate(self, tag, loads, chk, sleep=1, rec=None):
        a = self.a
        lr, lo = self.lab('retry'), self.lab('ok')
        self.vm_wait(tag)
        a(f's_mov_b32 s{sSPIN}, 0')
        a(f'{lr}:')
        self.check(chk)
        a(f's_cbranch_vccz {lo}')
        a(f's_add_u32 s{sSPIN}, s{sSPIN}, 1')
        a(f's_cmp_gt_u32 s{sSPIN}, {SPIN}')
        a('s_cbranch_scc1 L_end')
        if sleep: a(f's_sleep {sleep}')
        a('s_mov_b64 exec, vcc')
        for l in loads: a(l)
        a('s_waitcnt vmcnt(0)')
        a(f's_branch {lr}')
        a(f'{lo}:')
        a('s_mov_b64 exec, -1')
        if self.stamps and rec is not None:
            a(f's_add_u32 s{sSPIN}, s{sSPIN}, 1')
            a(f'v_writelane_b32 v{vST}, s{sSPIN}, {16+rec}')

    def red_pub(self, lo, hi, lbase, sdst, blkstride, nparts, t, wait=None):
        a = self.a
        ls = self.lab('nored')
        one = hi - lo == 1
        assert lo == 0
        if one:
            a(f's_cmp_lg_u32 s{sV}, {lo}')
            a(f's_cbranch_scc1 {ls}')
            if wait: self.lds_wait(*wait)
            a(f'v_add_u32 v{vT1}, {lbase}, v{vRED}')
        else:
            a(f's_cmp_ge_u32 s{sV}, {hi}')
            a(f's_cbranch_scc1 {ls}')
            if wait: self.lds_wait(*wait)
            a(f's_lshl_b32 s{sT0}, s{sV}, 12')
            a(f's_add_u32 s{sT0}, s{sT0}, {lbase}')
            a(f'v_add_u32 v{vT1}, s{sT0}, v{vRED}')
        for k in range(nparts // 2):
            a(f'ds_read2st64_b64 v[{t+4*k}:{t+4*k+3}], v{vT1} offset0:{2*k} offset1:{2*k+1}')
        so = sdst
        if not one:
            a(f's_mul_i32 s{sT0}, s{sV}, {blkstride}')
            a(f's_add_u32 s{sT0}, s{sT0}, s{sdst}')
            so = sT0
        pk = lambda x, y: a(f'v_pk_add_f32 v[{x}:{x+1}], v[{x}:{x+1}], v[{y}:{y+1}]')
        if nparts == 8:
            a('s_waitcnt lgkmcnt(2)')
            pk(t, t + 2); pk(t + 4, t + 6)
            a('s_waitcnt lgkmcnt(0)')
            pk(t + 8, t + 10); pk(t + 12, t + 14); pk(t, t + 4); pk(t + 8, t + 12); pk(t, t + 8)
        else:
            a('s_waitcnt lgkmcnt(0)')
            pk(t, t + 2); pk(t + 4, t + 6); pk(t, t + 4)
        a(f'v_min_u32 v{t}, -2, v{t}')
        a(f'v_min_u32 v{t+1}, -2, v{t+1}')
        a(f'buffer_store_dwordx2 v[{t}:{t+1}], v{vRED}, {sr(SWS)}, s{so} offen sc1')
        a(f'{ls}:')

    def kl(self, j0, j1, depth=63):
        a = self.a
        for j in range(j0, j1):
            t, u, hf = j // 8, (j % 8) // 2, j % 2
            if j % 4 == 0 or j == j0:
                a(f's_add_u32 s{sT3}, s{sKB}, {t*512*8192 + (u//2)*4096}')
            if depth < 63 and len(self.vmq) >= depth: a(f's_waitcnt vmcnt({depth-1})')
            r = vK + 4 * j
            self.vm(f'K{t}', f'buffer_load_dwordx4 v[{r}:{r+3}], v{vKO}, {sr(SK)}, s{sT3} offen offset:{(u%2)*2048+hf*128} nt')

    def vl(self, t, depth=63):
        a = self.a
        for e in range(8):
            if e % 4 == 0:
                a(f's_add_u32 m0, s{sRINGB}, {(t%2)*8192 + (e//4)*4096}')
                a(f's_add_u32 s{sT3}, s{sKB}, {t*512*8192 + (e//4)*4096}')
            if depth < 63 and len(self.vmq) >= depth: a(f's_waitcnt vmcnt({depth-1})')
            vo = vV0 if e % 2 == 0 else vV1
            self.vm(f'V{t}', f'buffer_load_dwordx4 v{vo}, {sr(SV)}, s{sT3} offen offset:{(e%4)*1024} nt lds')

    def delay(self, name):
        n = self.cfg['D'].get(name, 0)
        while n > 0:
            self.a(f's_sleep {min(n,127)}'); n -= 127

    def gemv_consts(self, g, i, c, t):
        a = self.a
        a(f'v_lshrrev_b32 v{t}, 1, v{i}')
        a(f'v_and_b32 v{t+1}, 1, v{i}')
        a(f'v_lshlrev_b32 v{t+1}, 4, v{t+1}')
        a(f'v_mov_b32 v{t+2}, 0xffff')
        a(f'v_lshlrev_b32 v{t+1}, v{t+1}, v{t+2}')
        for d in range(4):
            a(f'v_cmp_eq_u32 vcc, {d}, v{t}')
            a(f'v_cndmask_b32 v{vMASK+d}, 0, v{t+1}, vcc')
        a(f'v_lshlrev_b32 v{vRED}, 3, v{vL}')
        a(f's_lshl_b32 s{sT0}, s{sV}, 9')
        a(f'v_lshlrev_b32 v{vOW}, 5, v{i}')
        a(f'v_lshl_add_u32 v{vOW}, v{g}, 4, v{vOW}')
        a(f'v_add_u32 v{vOW}, s{sT0}, v{vOW}')

    def finish(self):
        a = self.a
        if self.stamps:
            a('s_waitcnt vmcnt(0)')
            self.stamp(15)
            a(f's_mul_i32 s{sT0}, s2, 12')
            a(f's_add_u32 s{sT0}, s{sT0}, s{sWID}')
            a(f's_lshl_b32 s{sT0}, s{sT0}, 7')
            a(f's_add_u32 s{sT0}, s{sT0}, {128<<20}')
            a(f'v_lshlrev_b32 v{vT0}, 2, v{vL}')
            a('s_mov_b32 exec_hi, 0')
            a(f'buffer_store_dword v{vST}, v{vT0}, {sr(SWS)}, s{sT0} offen')
        a('s_endpgm')

    def sum_halves(self, b, n):
        a = self.a
        step = 1
        while step < n:
            for q in range(0, n, 2 * step):
                for k in range(4): a(f'v_add_f32 v{b+4*q+k}, v{b+4*q+k}, v{b+4*(q+step)+k}')
            step *= 2
        a(f'v_permlane32_swap_b32 v{b}, v{b+2}')
        a(f'v_permlane32_swap_b32 v{b+1}, v{b+3}')
        a(f'v_add_f32 v{b}, v{b}, v{b+2}')
        a(f'v_add_f32 v{b+1}, v{b+1}, v{b+3}')

    def sfix(self, t):
        a = self.a
        d = vD1 if t & 1 else vD0
        for r in range(4):
            a(f'v_cndmask_b32 v{d+r}, v{d+4+r}, v{d+r}, s[{sSEL}:{sSEL+1}]')
            a(f'v_cndmask_b32 v{d+8+r}, v{d+12+r}, v{d+8+r}, s[{sSEL}:{sSEL+1}]')
        for r in range(4): a(f'v_permlane32_swap_b32 v{d+r}, v{d+8+r}')
        s = vS + 4 * t
        for r in range(4): a(f'v_add_f32_dpp v{s+r}, v{d+8+r}, v{d+r} row_ror:8 {DPP}')
        for h in range(2):
            x, y = s + 2 * h, s + 2 * h + 1
            a(f'v_cvt_pk_bf16_f32 v{y}, v{x}, v{y}')
            a(f'v_lshlrev_b32 v{x}, 16, v{y}')
            a(f'v_and_b32 v{y}, 0xffff0000, v{y}')
            a(f'v_mul_f32 v{x}, {SCALE}, v{x}')
            a(f'v_mul_f32 v{y}, {SCALE}, v{y}')
            a(f'v_cvt_pk_bf16_f32 v{y}, v{x}, v{y}')
            a(f'v_lshlrev_b32 v{x}, 16, v{y}')
            a(f'v_and_b32 v{y}, 0xffff0000, v{y}')

    def base(self, d, b):
        self.a(f's_mov_b32 s{d}, s{b}'); self.a(f's_and_b32 s{d+1}, s{b+1}, 0xffff')

    def build(self):
        a = self.a
        for l in HDR: a(l)
        header(a, 256, 768, LDS_BYTES, '; @stamps 12 16' if self.stamps else '')
        a('s_cmp_ge_u32 s2, 256')
        a('s_cbranch_scc1 L_end')
        a('s_load_dwordx16 s[4:19], s[0:1], 0')
        a('s_load_dwordx8 s[20:27], s[0:1], 64')
        a('s_load_dwordx4 s[28:31], s[0:1], 96')
        a(f'v_lshrrev_b32 v2, 6, v0')
        a(f'v_and_b32 v{vL}, 63, v0')
        a(f'v_readfirstlane_b32 s{sV}, v2')
        if self.stamps: a(f'v_mov_b32 v{vST}, 0')
        a(f'v_lshrrev_b32 v32, 4, v{vL}')
        a(f'v_and_b32 v33, 15, v{vL}')
        a(f'v_mov_b32 v{vCNT}, {L_CNT}')
        a(f'v_mov_b32 v{vONE}, 1')
        a(f's_and_b32 s{sKVH}, s2, 3')
        a(f's_and_b32 s{sX}, s2, 7')
        a(f's_bfe_u32 s{sRG}, s2, 0x30003')
        a(f's_bfe_u32 s{sJ}, s2, 0x40003')
        a(f's_lshr_b32 s{sISX}, s2, 7')
        for d, n in ((SK, 64 << 20), (SM, 12 << 20), (SC, 2048), (SWS, 256 << 20), (SX, 2048), (SWQ, 8 << 20), (SDB, 256), (SV, 64 << 20)):
            a(f's_mov_b32 s{d+2}, {n}'); a(f's_mov_b32 s{d+3}, 0x20000')
        a(f's_cmp_lt_u32 s{sV}, 4')
        a('s_cbranch_scc1 L_chain')
        self.attention()
        a('L_chain:')
        self.chain()
        a('L_end:')
        a('s_endpgm')
        footer(a, NVGPR, NVGPR, 102)
        pol = self.cfg.get('POL', {})
        out = []
        for l in a.l:
            if l.startswith('buffer_load') and ' nt' in l:
                key = 'K' if sr(SK) in l else 'V' if sr(SV) in l else 'H' if (sr(SM) in l or sr(SWQ) in l) else 'T'
                l = l.replace(' nt', (' ' + pol.get(key, 'nt')).rstrip())
            out.append(l)
        a.l = out
        return pad(a.text())

    def cnt_check(self):
        a = self.a
        lo, lr = self.lab('cntok'), self.lab('cnt')
        for k in range(4):
            if k: a(f's_sleep {self.cfg["SLC"]}')
            a(f's_load_dword s{sT0}, s[28:29], {64*k}')
            a('s_waitcnt lgkmcnt(0)')
            a(f's_cmp_ge_u32 s{sT0}, 16')
            a(f's_cbranch_scc1 {lo}')
        a(f's_mov_b32 s{sSPIN}, 0')
        a('v_mov_b32 v12, 0')
        a(f'{lr}:')
        a(f's_sleep {self.cfg["SLH"]}')
        a(f'buffer_load_dword v13, v12, {sr(SDB)}, 0 offen sc1')
        a('s_waitcnt vmcnt(0)')
        a('v_cmp_gt_u32 vcc, 16, v13')
        a(f's_cbranch_vccz {lo}')
        a(f's_add_u32 s{sSPIN}, s{sSPIN}, 1')
        a(f's_cmp_gt_u32 s{sSPIN}, {SPIN}')
        a('s_cbranch_scc1 L_end')
        a(f's_branch {lr}')
        a(f'{lo}:')

    def init_barrier(self):
        a = self.a
        l = self.lab('noinit')
        a(f's_cmp_lg_u32 s{sV}, 0')
        a(f's_cbranch_scc1 {l}')
        a(f'v_mov_b32 v12, 0')
        a(f'v_lshl_add_u32 v13, v{vL}, 2, v{vCNT}')
        a('s_mov_b64 exec, 0xffff')
        a('ds_write_b32 v13, v12')
        a('s_mov_b64 exec, -1')
        a('s_waitcnt lgkmcnt(0)')
        a(f'{l}:')
        a('s_barrier')

    def chain(self):
        a = self.a; cfg = self.cfg
        a('s_setprio 3')
        a(f'v_and_b32 v34, 3, v{vL}')
        a(f'v_lshlrev_b32 v36, 4, v33')
        a(f'v_mul_u32_u24 v37, 12288, v32')
        a(f'v_add_u32 v37, v37, v36')
        a(f'v_lshl_add_u32 v38, v32, 13, v36')
        a(f'v_lshl_add_u32 v{vC4G}, v34, 2, v32')
        a(f'v_lshlrev_b32 v{vC4G}, 1, v{vC4G}')
        a(f'v_lshlrev_b32 v39, 4, v{vL}')
        a(f's_cmp_lg_u32 s{sISX}, 0')
        a('s_cbranch_scc1 L_chain_x')
        self.vmq = []
        a(f's_lshr_b32 s{sT0}, s{sJ}, 1')
        a(f's_lshl_b32 s{sT1}, s{sT0}, 7')
        a(f's_lshl_b32 s{sT2}, s{sV}, 5')
        a(f's_add_u32 s{sT1}, s{sT1}, s{sT2}')
        a(f's_lshl_b32 s{sT3}, s{sT1}, 1')
        a(f's_mul_i32 s{sKB}, s{sT1}, 12288')
        a(f's_lshl_b32 s{sT1}, s{sKVH}, 1')
        a(f's_lshr_b32 s{sT2}, s{sX}, 2')
        a(f's_add_u32 s{sT1}, s{sT1}, s{sT2}')
        a(f's_and_b32 s{sT2}, s{sJ}, 1')
        a(f's_lshl_b32 s{sT2}, s{sT2}, 3')
        a(f's_add_u32 s{sT1}, s{sT1}, s{sT2}')
        a(f's_lshl_b32 s{sT2}, s{sT1}, 8')
        a(f's_add_u32 s{sKB}, s{sKB}, s{sT2}')
        a(f's_lshl_b32 s{sT1}, s{sT1}, 3')
        a(f's_add_u32 s{sT1}, s{sT1}, s{sT0}')
        a(f's_lshl_b32 s{sDST2}, s{sT1}, 9')
        a(f's_lshr_b32 s{sT0}, s{sX}, 2')
        a(f's_lshl_b32 s{sT0}, s{sT0}, 4')
        a(f's_add_u32 s{sT0}, s{sT0}, s{sJ}')
        a(f's_lshl_b32 s{sT1}, s{sT0}, 2')
        a(f's_add_u32 s{sT1}, s{sT1}, s{sKVH}')
        a(f's_lshl_b32 s{sT1}, s{sT1}, 9')
        a(f's_add_u32 s{sOWN}, s{sT1}, {E_PQ}')
        a(f's_lshl_b32 s{sT0}, s{sT0}, 8')
        a(f's_lshl_b32 s{sT1}, s{sKVH}, 21')
        a(f's_add_u32 s{sT0}, s{sT0}, s{sT1}')
        a(f's_lshl_b32 s{sT1}, s{sV}, 19')
        a(f's_add_u32 s{sTB}, s{sT0}, s{sT1}')
        a('s_waitcnt lgkmcnt(0)')
        self.stamp(0)
        self.base(SC, 22); self.base(SM, 24)
        self.vm('c', f'buffer_load_ushort v16, v{vC4G}, {sr(SC)}, s{sT3} offen')
        self.vm('c', f'buffer_load_ushort v17, v{vC4G}, {sr(SC)}, s{sT3} offen offset:32')
        for n in range(8):
            self.vm('wm0', f'buffer_load_dwordx4 v[{40+4*n}:{43+4*n}], v37, {sr(SM)}, s{sKB} offen nt')
            if n < 7: a(f's_add_u32 s{sKB}, s{sKB}, {4*12288}')
        self.base(SX, 4); self.base(SWQ, 10); self.base(SWS, 30); self.base(SDB, 28)
        a(f's_mov_b32 s{sWID}, s{sV}')
        a(f's_lshl_b32 s{sT0}, s2, 2')
        a(f's_add_u32 s{sT0}, s{sT0}, s{sV}')
        a(f's_mul_i32 s{sT0}, s{sT0}, {CLRW}')
        a(f's_add_u32 s{sT0}, s{sT0}, {LB}')
        for k in range(4): a(f'v_mov_b32 v{28+k}, -1')
        for k in range(4):
            if k == 3: a(f's_mov_b64 exec, {(1 << ((CLRW - 3072) // 16)) - 1}')
            self.vm('clr', f'buffer_store_dwordx4 v[28:31], v39, {sr(SWS)}, s{sT0} offen offset:{1024*k} sc1')
        a('s_mov_b64 exec, -1')
        self.init_barrier()
        a(f'v_lshlrev_b32 v35, 5, v{vL}')
        self.vm('x', f'buffer_load_dwordx4 v[136:139], v35, {sr(SX)}, 0 offen')
        self.vm('x', f'buffer_load_dwordx4 v[140:143], v35, {sr(SX)}, 0 offen offset:16')
        a(f's_lshl_b32 s{sT0}, s{sKVH}, 9')
        a(f's_lshl_b32 s{sT1}, s{sV}, 7')
        a(f's_add_u32 s{sT0}, s{sT0}, s{sT1}')
        for k in range(4):
            self.vm('x', f'buffer_load_ushort v{20+k}, v{vC4G}, {sr(SX)}, s{sT0} offen offset:{32*k}')
        def wq(n0, n1):
            for n in range(n0, n1):
                a(f's_add_u32 s{sT2}, s{sTB}, {4*n*8192}')
                self.vm('wq', f'buffer_load_dwordx4 v[{72+4*n}:{75+4*n}], v38, {sr(SWQ)}, s{sT2} offen nt')
        self.gemv_consts(32, 33, 34, 12)
        self.vm_wait('c')
        for k in range(2):
            a(f'v_lshlrev_b32 v{16+k}, 16, v{16+k}')
            self.silu(16 + k, 16 + k, 12)
            a(f'v_cvt_pk_bf16_f32 v{16+k}, v{16+k}, v{16+k}')
        for n in range(4): self.afrag(144 + 4 * n, 16, n)
        self.vm_wait('wm0')
        for n in range(4): self.mf(160, 144, 40, n, n == 0)
        for n in range(4): self.afrag(144 + 4 * n, 17, n)
        for n in range(4): self.mf(160, 144, 56, n, False)
        self.stamp(1)
        self.out_write([160], L_M)
        a('s_waitcnt vmcnt(0)')
        self.vmq = []
        self.lds_arrive(0)
        a(f's_cmp_lg_u32 s{sV}, 0')
        a('s_cbranch_scc1 L_y_nocnt')
        self.cnt_check()
        self.lds_arrive(1)
        self.stamp(7)
        a('L_y_nocnt:')
        self.red_pub(0, 1, L_M, sDST2, 0, 4, 12, wait=(0, 4))
        self.stamp(2)
        wq(0, 16)
        self.vm_wait('x')
        for k in range(8):
            a(f'v_lshlrev_b32 v{144+2*k}, 16, v{136+k}')
            a(f'v_and_b32 v{145+2*k}, 0xffff0000, v{136+k}')
        a('v_add_f32 v28, v144, v145')
        for k in range(2, 16): a(f'v_add_f32 v28, v28, v{144+k}')
        self.allred('v_add_f32', [28], (0, 1, 3, 2, 4, 5), [12])
        a(f'v_mul_f32 v28, 0x3a800000, v28')
        for k in range(16): a(f'v_sub_f32 v{144+k}, v{144+k}, v28')
        a('v_mul_f32 v29, v144, v144')
        for k in range(1, 16): a(f'v_fmac_f32 v29, v{144+k}, v{144+k}')
        self.allred('v_add_f32', [29], (0, 1, 3, 2, 4, 5), [12])
        a(f'v_mul_f32 v29, 0x3a800000, v29')
        self.ln_stats(28, 29)
        for k in range(4): a(f'v_lshlrev_b32 v{20+k}, 16, v{20+k}')
        a(f'v_lshrrev_b32 v12, 3, v{vL}')
        a(f'v_lshlrev_b32 v12, 9, v12')
        a(f'v_bfe_u32 v13, v{vL}, 2, 1')
        a(f'v_lshl_add_u32 v12, v13, 15, v12')
        a(f'v_lshl_add_u32 v30, v34, 4, v12')
        a(f's_lshl_b32 s{sT0}, s{sKVH}, 1')
        a(f's_lshr_b32 s{sT1}, s{sV}, 1')
        a(f's_add_u32 s{sT0}, s{sT0}, s{sT1}')
        a(f's_lshl_b32 s{sT0}, s{sT0}, 12')
        a(f's_and_b32 s{sT1}, s{sV}, 1')
        a(f's_lshl_b32 s{sT1}, s{sT1}, 8')
        a(f's_add_u32 s{sB0}, s{sT0}, s{sT1}')
        loads = [f'buffer_load_dwordx4 v[{40+4*n}:{43+4*n}], v30, {sr(SWS)}, s{sB0} offen offset:{64*n} sc1' for n in range(4)]
        self.vm_wait('wq')
        self.lds_wait(1, 1)
        self.delay('H1')
        self.issue('h1', loads)
        self.validate('h1', loads, range(40, 56), sleep=cfg['SLH'], rec=0)
        self.stamp(3)
        a(f's_mov_b32 s{sSEL}, 0xf0f0f0f0')
        a(f's_mov_b32 s{sSEL+1}, 0xf0f0f0f0')
        for hh in range(4):
            self.tred(40 + 4 * hh, 136, bits=(3,))
            self.rnd(136, 136)
            a(f'v_mov_b32_dpp v137, v136 row_ror:4 {DPP}')
            a(f'v_cndmask_b32 v138, v136, v137, s[{sSEL}:{sSEL+1}]')
            a(f'v_cndmask_b32 v139, v137, v136, s[{sSEL}:{sSEL+1}]')
            a('v_add_f32 v139, 1.0, v139')
            self.rnd(139, 139)
            self.ln_apply(140, 20 + hh, 28, 29, 139, 138, 141)
            for n in range(4): self.afrag(144 + 4 * n, 140, n)
            for n in range(4): self.mf(160, 144, 72 + 16 * hh, n, n == 0 and hh == 0)
        self.out_write([160], L_Q)
        self.lds_arrive(2)
        self.red_pub(0, 1, L_Q, sOWN, 0, 4, 12, wait=(2, 4))
        self.stamp(4)
        a('s_branch L_h2')
        a('L_chain_x:')
        self.vmq = []
        a(f's_and_b32 s{sT0}, s2, 127')
        a(f's_lshl_b32 s{sT1}, s{sT0}, 9')
        a(f's_add_u32 s{sDST2}, s{sT1}, {W_M12}')
        a(f's_lshl_b32 s{sT1}, s{sKVH}, 8')
        a(f's_lshl_b32 s{sT2}, s{sV}, 6')
        a(f's_add_u32 s{sT1}, s{sT1}, s{sT2}')
        a(f's_lshl_b32 s{sT3}, s{sT1}, 1')
        a(f's_mul_i32 s{sKB}, s{sT1}, 12288')
        a(f's_lshr_b32 s{sT1}, s{sT0}, 2')
        a(f's_lshl_b32 s{sT1}, s{sT1}, 8')
        a(f's_add_u32 s{sKB}, s{sKB}, s{sT1}')
        a(f's_add_u32 s{sKB}, s{sKB}, 4096')
        a('s_waitcnt lgkmcnt(0)')
        self.stamp(0)
        self.base(SWS, 30); self.base(SDB, 28); self.base(SC, 22); self.base(SM, 24)
        a(f's_mov_b32 s{sWID}, s{sV}')
        self.init_barrier()
        for k in range(4):
            self.vm('c', f'buffer_load_ushort v{16+k}, v{vC4G}, {sr(SC)}, s{sT3} offen offset:{32*k}')
        for n in range(16):
            self.vm(f'wm{n//4}', f'buffer_load_dwordx4 v[{40+4*n}:{43+4*n}], v37, {sr(SM)}, s{sKB} offen nt')
            if n < 15: a(f's_add_u32 s{sKB}, s{sKB}, {4*12288}')
        self.gemv_consts(32, 33, 34, 12)
        self.vm_wait('c')
        for k in range(4):
            a(f'v_lshlrev_b32 v{16+k}, 16, v{16+k}')
            self.silu(16 + k, 16 + k, 12)
            a(f'v_cvt_pk_bf16_f32 v{16+k}, v{16+k}, v{16+k}')
        for k in range(4):
            for n in range(4): self.afrag(144 + 4 * n, 16 + k, n)
            self.vm_wait(f'wm{k}')
            for n in range(4): self.mf(160, 144, 40 + 16 * k, n, n == 0 and k == 0)
        self.out_write([160], L_M)
        self.lds_arrive(0)
        self.stamp(2)
        self.cnt_check()
        a('L_h2:')
        self.vmq = []
        a(f'v_lshrrev_b32 v32, 5, v{vL}')
        a(f'v_and_b32 v33, 31, v{vL}')
        a(f'v_lshlrev_b32 v34, 4, v33')
        a(f'v_lshl_add_u32 v37, v32, 3, v34')
        a(f'v_lshrrev_b32 v38, 1, v37')
        a(f's_mul_i32 s{sT0}, s{sV}, {2*QSTR}')
        a(f's_add_u32 s{sT0}, s{sT0}, {L_QB}')
        a(f'v_add_u32 v38, s{sT0}, v38')
        a(f's_lshl_b32 s{sT0}, s{sV}, 9')
        a(f's_add_u32 s{sT0}, s{sT0}, {L_MOD}')
        a(f'v_add_u32 v37, s{sT0}, v37')
        a(f's_lshl_b32 s{sT0}, s{sKVH}, 2')
        a(f's_add_u32 s{sT0}, s{sT0}, s{sV}')
        a(f's_lshl_b32 s{sT0}, s{sT0}, 12')
        a(f's_add_u32 s{sB0}, s{sT0}, {E_PQ}')
        loads = [f'buffer_load_dwordx4 v[{40+4*n}:{43+4*n}], v39, {sr(SWS)}, s{sB0} offen offset:{1024*n} sc1' for n in range(4)]
        self.lds_wait(6, 1, sleep=4)
        self.issue('h2', loads)
        self.validate('h2', loads, range(40, 56), sleep=cfg['SLH'], rec=1)
        for hh in range(2):
            b = 40 + 8 * hh
            self.sum_halves(b, 2)
            a(f'v_cvt_pk_bf16_f32 v{b}, v{b}, v{b+1}')
            a(f'ds_write_b32 v38, v{b} offset:{QSTR*hh}')
        self.lds_arrive(3)
        self.stamp(5)
        a(f's_cmp_eq_u32 s{sV}, 0')
        a('s_cbranch_scc1 L_g0')
        a(f's_lshl_b32 s{sT0}, s{sV}, 3')
        a(f's_add_u32 s{sT0}, s{sT0}, s{sRG}')
        a(f's_cmp_eq_u32 s{sISX}, 0')
        a('s_cbranch_scc1 L_modgo')
        a(f's_cmp_lg_u32 s{sJ}, 15')
        a('s_cbranch_scc1 L_chain_fin')
        a(f's_cmp_lg_u32 s{sV}, 1')
        a('s_cbranch_scc1 L_chain_fin')
        a(f's_mov_b32 s{sT0}, s{sX}')
        a('L_modgo:')
        a(f's_lshl_b32 s{sT0}, s{sT0}, 11')
        a(f's_add_u32 s{sB0}, s{sT0}, {W_M12}')
        modl = [f'buffer_load_dwordx4 v[{56+4*n}:{59+4*n}], v39, {sr(SWS)}, s{sB0} offen offset:{1024*n} sc1' for n in range(2)]
        self.lds_wait(4, cfg['NMOD'], sleep=8)
        self.issue('mod', modl)
        self.validate('mod', modl, range(56, 64), sleep=cfg['SLH'], rec=2)
        self.sum_halves(56, 2)
        self.rnd(56, 56); self.rnd(57, 57)
        a(f's_cmp_lg_u32 s{sV}, 2')
        a('s_cbranch_scc1 L_nocb')
        a('v_add_f32 v56, 1.0, v56')
        a('v_add_f32 v57, 1.0, v57')
        self.rnd(56, 56); self.rnd(57, 57)
        a('L_nocb:')
        a('ds_write_b64 v37, v[56:57]')
        a('s_branch L_chain_fin')
        a('L_g0:')
        a(f's_cmp_eq_u32 s{sISX}, 0')
        a('s_cbranch_scc1 L_chain_fin')
        self.vmq = []
        self.red_pub(0, 1, L_M, sDST2, 0, 4, 12, wait=(0, 4))
        a(f's_lshr_b32 s{sT0}, s{sX}, 2')
        a(f's_lshl_b32 s{sT0}, s{sT0}, 2')
        a(f's_lshr_b32 s{sT1}, s{sJ}, 2')
        a(f's_add_u32 s{sT0}, s{sT0}, s{sT1}')
        a(f's_lshl_b32 s{sT0}, s{sT0}, 3')
        a(f's_mul_i32 s{sT1}, s{sKVH}, {PAS}')
        a(f's_add_u32 s{sT0}, s{sT0}, s{sT1}')
        a(f's_add_u32 s{sB0}, s{sT0}, {W_PA + 4096}')
        a(f'v_and_b32 v20, 3, v{vL}')
        a(f'v_lshrrev_b32 v21, 2, v{vL}')
        a(f'v_lshl_add_u32 v20, v20, 4, v21')
        a(f'v_mul_u32_u24 v20, {4*PAS}, v20')
        mll = [f'buffer_load_dwordx2 v[22:23], v20, {sr(SWS)}, s{sB0} offen sc1']
        self.lds_wait(7, cfg['NML'], sleep=8)
        self.issue('ml', mll)
        self.validate('ml', mll, (22, 23), sleep=cfg['SLH'], rec=3)
        a('v_mov_b32 v16, v22')
        self.allred('v_max_f32', [16], (0, 1, 3, 2, 4, 5), [17])
        a('v_sub_f32 v22, v22, v16')
        a(f'v_mul_f32 v22, {LOG2E}, v22')
        a('v_exp_f32 v22, v22')
        a('v_mul_f32 v23, v23, v22')
        self.allred('v_add_f32', [23], (0, 1, 3, 2, 4, 5), [17])
        a('v_rcp_f32 v23, v23')
        a(f'v_lshlrev_b32 v16, 2, v{vL}')
        a(f'v_add_u32 v16, {L_W}, v16')
        a('v_mul_f32 v22, v22, v23')
        a('ds_write_b32 v16, v22')
        self.stamp(6)
        a('L_chain_fin:')
        a('s_waitcnt lgkmcnt(0)')
        self.finish()

    def w1(self, n, vo=None):
        a = self.a
        for _ in range(n):
            j = self.wnext
            if j >= 8: return
            self.wnext += 1
            k, b = j // 2, j % 2
            if b == 0 or _ == 0:
                if k == 0: a(f's_mov_b32 s{sT3}, s{sW1B}')
                else:
                    a(f's_mul_i32 s{sT3}, s{sW1S}, {k}'); a(f's_add_u32 s{sT3}, s{sT3}, s{sW1B}')
            r = 40 + 16 * b + 4 * k
            self.vm('w1', f'buffer_load_dwordx4 v[{r}:{r+3}], v{vo or vW1}, {sr(SW1)}, s{sT3} offen offset:{256*b} nt')

    def attention(self):
        a = self.a; cfg = self.cfg
        KF = cfg['KF']; P = cfg['PRIO']
        self.vmq = []
        a(f's_mov_b32 s{sSPIN}, s{sV}')
        a(f's_sub_u32 s{sV}, s{sV}, 4')
        a(f'v_and_b32 v34, 7, v{vL}')
        a(f'v_lshlrev_b32 v{vKO}, 8, v34')
        a(f'v_lshl_add_u32 v{vKO}, v32, 4, v{vKO}')
        a(f'v_bfe_u32 v34, v{vL}, 3, 1')
        a(f'v_lshl_add_u32 v{vKO}, v34, 6, v{vKO}')
        a(f's_lshr_b32 s{sT0}, s2, 2')
        a(f's_lshl_b32 s{sT0}, s{sT0}, 3')
        a(f's_add_u32 s{sT0}, s{sT0}, s{sV}')
        a(f's_lshl_b32 s{sT0}, s{sT0}, 13')
        a(f's_lshl_b32 s{sKB}, s{sKVH}, 24')
        a(f's_add_u32 s{sKB}, s{sKB}, s{sT0}')
        a(f'v_lshlrev_b32 v39, 4, v{vL}')
        for k in range(4): a(f'v_mov_b32 v{28+k}, -1')
        a(f's_sub_u32 s{sT1}, s2, 128')
        a(f's_lshl_b32 s{sT2}, s{sV}, 8')
        a(f's_add_u32 s{sT2}, s{sT2}, s{sT1}')
        a(f's_lshl_b32 s{sT1}, s{sT1}, 13')
        a('s_waitcnt lgkmcnt(0)')
        self.stamp(0)
        self.base(SWS, 30); self.base(SK, 6); self.base(SDB, 28)
        a(f's_cmp_ge_u32 s{sT2}, 16')
        a('s_cbranch_scc1 L_noearly')
        a('s_setprio 3')
        for k in range(8):
            if k == 4: a(f's_add_u32 s{sT1}, s{sT1}, 4096')
            a(f'buffer_store_dwordx4 v[28:31], v39, {sr(SWS)}, s{sT1} offen offset:{(k%4)*1024} sc1')
        a(f'v_lshlrev_b32 v38, 6, v{vL}')
        a('s_mov_b64 exec, 15')
        a('s_waitcnt vmcnt(0)')
        a(f'buffer_atomic_add v{vONE}, v38, {sr(SDB)}, 0 offen sc1')
        a('s_mov_b64 exec, -1')
        self.stamp(1)
        a('L_noearly:')
        self.kl(0, KF)
        a('s_barrier')
        self.base(SV, 8); self.base(SX, 4)
        a(f's_cmp_lg_u32 s{sISX}, 0')
        a(f's_cselect_b32 s{SW1}, s12, s16')
        a(f's_cselect_b32 s{SW1+1}, s13, s17')
        a(f's_mov_b32 s{SW1+2}, {7<<20}')
        a(f's_cselect_b32 s{SW1+2}, {8<<20}, s{SW1+2}')
        a(f's_and_b32 s{SW1+1}, s{SW1+1}, 0xffff')
        a(f's_mov_b32 s{SW1+3}, 0x20000')
        srd(a, SU, 18, 7 << 20); srd(a, SD, 20, 7 << 20); srd(a, SO, 26, 2048)
        a(f's_mov_b32 s{sWID}, s{sSPIN}')
        for par, reg in ((0, vV0), (1, vV1)):
            a(f'v_lshlrev_b32 v34, 1, v32')
            if par: a(f'v_add_u32 v34, 8, v34')
            a(f'v_xor_b32 v34, v34, v33')
            a(f'v_lshlrev_b32 v34, 4, v34')
            a(f'v_lshl_add_u32 v{reg}, v32, 8, v34')
        a(f's_lshl_b32 s{sRINGB}, s{sV}, 14')
        a(f's_setprio {P[0]}')
        self.kl(KF, cfg['NQ'], cfg['TD'])
        self.lds_arrive(6)
        self.kl(cfg['NQ'], 32, cfg['TD'])
        self.stamp(2)
        a(f's_setprio {P[1]}')
        self.vl(0, cfg['TDV'])
        self.vl(1, cfg['TDV'])
        a(f's_setprio {P[2]}')
        self.stamp(3)
        a(f's_lshl_b32 s{sV64}, s{sV}, 6')
        a(f's_mov_b32 s{sSEL}, 0x00ff00ff')
        a(f's_mov_b32 s{sSEL+1}, 0xff00ff00')
        a(f's_mul_i32 s{sOWN}, s2, {PAS}')
        a(f's_add_u32 s{sOWN}, s{sOWN}, {W_PA}')
        a(f's_lshl_b32 s{sPAO}, s{sV}, 9')
        a(f's_add_u32 s{sPAO}, s{sPAO}, s{sOWN}')
        a(f's_cmp_lg_u32 s{sISX}, 0')
        a('s_cbranch_scc1 L_base_x')
        a(f's_lshr_b32 s{sT0}, s{sJ}, 3')
        a(f's_lshl_b32 s{sT0}, s{sT0}, 3')
        a(f's_add_u32 s{sTEAM}, s{sT0}, s{sX}')
        a(f's_lshl_b32 s{sT0}, s{sRG}, 7')
        a(f's_lshl_b32 s{sT1}, s{sV}, 4')
        a(f's_add_u32 s{sT0}, s{sT0}, s{sT1}')
        a(f's_lshl_b32 s{sXO}, s{sT0}, 1')
        a(f's_mul_i32 s{sT0}, s{sT0}, 7168')
        a(f's_lshl_b32 s{sT1}, s{sTEAM}, 9')
        a(f's_add_u32 s{sW1B}, s{sT0}, s{sT1}')
        a(f's_mov_b32 s{sW1S}, {4*7168}')
        a(f's_lshl_b32 s{sT0}, s{sTEAM}, 19')
        a(f's_lshl_b32 s{sT1}, s{sV}, 16')
        a(f's_add_u32 s{sT0}, s{sT0}, s{sT1}')
        a(f's_lshl_b32 s{sT1}, s{sRG}, 8')
        a(f's_add_u32 s{sDNB}, s{sT0}, s{sT1}')
        a(f's_lshl_b32 s{sT0}, s{sTEAM}, 14')
        a(f's_add_u32 s{sTB}, s{sT0}, {W_PC}')
        a(f's_lshl_b32 s{sT1}, s{sRG}, 11')
        a(f's_add_u32 s{sDST}, s{sTB}, s{sT1}')
        a(f's_lshl_b32 s{sT0}, s{sRG}, 13')
        a(f's_add_u32 s{sGA}, s{sT0}, {W_PD}')
        a(f's_lshl_b32 s{sT1}, s{sTEAM}, 9')
        a(f's_add_u32 s{sDST2}, s{sGA}, s{sT1}')
        a(f's_mov_b32 s{sH}, 7168')
        a('s_branch L_base_j')
        a('L_base_x:')
        a(f's_mov_b32 s{sTEAM}, 0')
        a(f's_lshr_b32 s{sT0}, s{sX}, 2')
        a(f's_lshl_b32 s{sT0}, s{sT0}, 2')
        a(f's_lshr_b32 s{sT1}, s{sJ}, 2')
        a(f's_add_u32 s{sT0}, s{sT0}, s{sT1}')
        a(f's_lshl_b32 s{sT1}, s{sT0}, 9')
        a(f's_add_u32 s{sT1}, s{sT1}, s{sV64}')
        a(f's_mul_i32 s{sT2}, s{sKVH}, {PAS}')
        a(f's_add_u32 s{sT1}, s{sT1}, s{sT2}')
        a(f's_add_u32 s{sGA}, s{sT1}, {W_PA}')
        a(f's_lshl_b32 s{sT1}, s{sKVH}, 3')
        a(f's_add_u32 s{sT0}, s{sT0}, s{sT1}')
        a(f's_and_b32 s{sT2}, s{sJ}, 3')
        a(f's_lshl_b32 s{sT1}, s{sT0}, 9')
        a(f's_lshl_b32 s{sDST}, s{sT2}, 15')
        a(f's_add_u32 s{sDST}, s{sDST}, s{sT1}')
        a(f's_add_u32 s{sDST}, s{sDST}, {W_PB}')
        a(f's_lshl_b32 s{sT0}, s{sT0}, 18')
        a(f's_lshl_b32 s{sT1}, s{sV}, 15')
        a(f's_add_u32 s{sT0}, s{sT0}, s{sT1}')
        a(f's_lshl_b32 s{sT2}, s{sT2}, 9')
        a(f's_add_u32 s{sW1B}, s{sT0}, s{sT2}')
        a(f's_mov_b32 s{sW1S}, {4*2048}')
        a(f's_lshl_b32 s{sT0}, s{sX}, 8')
        a(f's_lshl_b32 s{sT1}, s{sV}, 5')
        a(f's_add_u32 s{sXO}, s{sT0}, s{sT1}')
        a(f's_lshl_b32 s{sT0}, s{sX}, 14')
        a(f's_add_u32 s{sT0}, s{sT0}, s{sV64}')
        a(f's_add_u32 s{sTB}, s{sT0}, {W_PB}')
        a(f's_mul_i32 s{sT0}, s{sX}, 768')
        a(f's_add_u32 s{sDST2}, s{sT0}, {W_XS}')
        a(f's_mov_b32 s{sDNB}, 0')
        a(f's_mov_b32 s{sH}, 2048')
        a('L_base_j:')
        a(f'v_and_b32 v24, 7, v{vL}')
        a(f'v_mul_u32_u24 v24, {QSTR}, v24')
        a(f'v_lshl_add_u32 v24, v32, 4, v24')
        a(f'v_add_u32 v24, {L_QB}, v24')
        a(f'v_bfe_u32 v26, v{vL}, 3, 1')
        a(f'v_lshl_add_u32 v25, v26, 6, v24')
        a(f'v_xor_b32 v26, 1, v26')
        a(f'v_lshl_add_u32 v24, v26, 6, v24')
        self.lds_wait(3, 4, sleep=2)
        self.stamp(4)
        for ty, reg in ((0, 25), (1, 24)):
            for hf in range(2):
                b = vBQ + 8 * ty + 4 * hf
                a(f'ds_read_b128 v[{b}:{b+3}], v{reg} offset:{128*hf}')
        a('s_waitcnt lgkmcnt(0)')
        for t in range(4):
            self.vm_wait(f'K{t}')
            for hf in range(2):
                for u in range(4):
                    kr = vK + 32 * t + 8 * u + 4 * hf
                    b = vBQ + 8 * (u & 1) + 4 * hf
                    d = (vD1 if t & 1 else vD0) + 4 * u
                    c = '0' if hf == 0 else f'v[{d}:{d+3}]'
                    a(f'v_mfma_f32_16x16x32_bf16 v[{d}:{d+3}], v[{kr}:{kr+3}], v[{b}:{b+3}], {c}')
            if t > 0: self.sfix(t - 1)
        self.sfix(3)
        S = list(range(vS, vS + 16))
        a(f'v_max3_f32 v88, v{S[0]}, v{S[1]}, v{S[2]}')
        for k in range(3, 15, 2): a(f'v_max3_f32 v88, v88, v{S[k]}, v{S[k+1]}')
        a(f'v_max_f32 v88, v88, v{S[15]}')
        self.allred('v_max_f32', [88], (3, 4, 5), [89])
        for r in S: a(f'v_sub_f32 v{r}, v{r}, v88')
        for r in S: a(f'v_mul_f32 v{r}, {LOG2E}, v{r}')
        for r in S: a(f'v_exp_f32 v{r}, v{r}')
        a(f'v_add_f32 v89, v{S[0]}, v{S[1]}')
        for r in S[2:]: a(f'v_add_f32 v89, v89, v{r}')
        self.allred('v_add_f32', [89], (3, 4, 5), [90])
        a(f'v_lshlrev_b32 v{vRED}, 3, v{vL}')
        a(f's_add_u32 s{sT0}, s{sV64}, {L_ML}')
        a(f'v_add_u32 v90, s{sT0}, v{vRED}')
        a('s_mov_b64 exec, 0xff')
        a('ds_write_b64 v90, v[88:89]')
        a('s_waitcnt lgkmcnt(0)')
        a('s_mov_b64 exec, 1')
        a(f'ds_add_rtn_u32 v91, v{vCNT}, v{vONE} offset:16')
        a('s_mov_b64 exec, -1')
        for t in range(4):
            a(f'v_cvt_pk_bf16_f32 v{vP+4*t}, v{vS+4*t}, v{vS+4*t+1}')
            a(f'v_cvt_pk_bf16_f32 v{vP+4*t+1}, v{vS+4*t+2}, v{vS+4*t+3}')
        for t in range(4):
            a(f'v_mov_b32_dpp v{vP+4*t+2}, v{vP+4*t} row_ror:8 {DPP}')
            a(f'v_mov_b32_dpp v{vP+4*t+3}, v{vP+4*t+1} row_ror:8 {DPP}')
        a(f'v_lshrrev_b32 v100, 4, v{vL}')
        a(f'v_and_b32 v101, 15, v{vL}')
        a(f'v_and_b32 v102, 3, v{vL}')
        a(f'v_lshrrev_b32 v103, 2, v{vL}')
        a(f'v_and_b32 v104, 3, v103')
        a(f'v_and_b32 v105, 1, v100')
        a(f'v_lshl_add_u32 v104, v105, 2, v104')
        a(f'v_lshrrev_b32 v105, 1, v100')
        a(f'v_lshl_add_u32 v105, v105, 4, v104')
        a(f'v_lshlrev_b32 v105, 8, v105')
        a(f'v_lshl_add_u32 v105, v102, 3, v105')
        a(f'v_add_u32 v105, s{sRINGB}, v105')
        for d in range(8):
            a(f'v_xor_b32 v106, {d}, v104')
            a(f'v_lshl_add_u32 v{vTR+d}, v106, 5, v105')
        a(f'v_lshlrev_b32 v106, 4, v101')
        a(f'v_lshl_add_u32 v{vW2D}, v100, 11, v106')
        a(f'v_mad_u32_u24 v{vW1}, v100, s{sH}, v106')
        a(f's_cmp_ge_u32 s{sTEAM}, 14')
        a(f's_cselect_b32 s{sT1}, {OOB}, 0')
        a(f'v_or_b32 v{vW1}, s{sT1}, v{vW1}')
        a(f's_cmp_eq_u32 s{sISX}, 0')
        a(f's_cselect_b32 s{sT1}, {OOB}, 0')
        a(f'v_or_b32 v{vW1X}, s{sT1}, v{vW1}')
        a(f'v_lshl_add_u32 v{vC4G}, v102, 2, v100')
        a(f'v_lshlrev_b32 v{vC4G}, 1, v{vC4G}')
        a('s_waitcnt lgkmcnt(0)')
        a(f'v_readfirstlane_b32 s{sT0}, v91')
        a(f's_cmp_lg_u32 s{sT0}, 7')
        a('s_cbranch_scc1 L_notlast')
        a(f'v_add_u32 v90, {L_ML}, v{vRED}')
        a('ds_read_b64 v[92:93], v90')
        a(f'v_lshrrev_b32 v96, 3, v{vL}')
        a(f'v_and_b32 v97, 7, v{vL}')
        a(f'v_lshlrev_b32 v97, 5, v97')
        a(f'v_lshl_add_u32 v96, v96, 2, v97')
        a(f'v_add_u32 v96, {L_F}, v96')
        a('s_waitcnt lgkmcnt(0)')
        a('v_mov_b32 v94, v92')
        self.allred('v_max_f32', [94], (3, 4, 5), [95])
        a('v_sub_f32 v92, v92, v94')
        a(f'v_mul_f32 v92, {LOG2E}, v92')
        a('v_exp_f32 v92, v92')
        a('v_mul_f32 v95, v93, v92')
        a('ds_write_b32 v96, v92')
        self.allred('v_add_f32', [95], (3, 4, 5), [93])
        a('v_min_u32 v94, -2, v94')
        a('v_min_u32 v95, -2, v95')
        a(f's_add_u32 s{sT0}, s{sOWN}, 4096')
        a('s_mov_b64 exec, 0xff')
        a('s_setprio 3')
        a(f'buffer_store_dwordx2 v[94:95], v{vRED}, {sr(SWS)}, s{sT0} offen sc1')
        a(f's_setprio {P[2]}')
        a('s_mov_b64 exec, -1')
        a('s_waitcnt lgkmcnt(0)')
        a('L_notlast:')
        self.stamp(6)
        aOWR, aORD0, aORD1, aF, aMOD, aW = 72, 73, 74, 75, 76, 77
        for t in range(4):
            self.vm_wait(f'V{t}')
            so = (t % 2) * 8192
            def rd(d):
                f = vVF + 4 * (d % 4)
                a(f'ds_read_b64_tr_b16 v[{f}:{f+1}], v{vTR+d} offset:{so}')
                a(f'ds_read_b64_tr_b16 v[{f+2}:{f+3}], v{vTR+d} offset:{so+2048}')
            for d in range(4): rd(d)
            for d in range(8):
                f = vVF + 4 * (d % 4)
                a(f's_waitcnt lgkmcnt({6 if d < 5 else 2*(7-d)})')
                c = '0' if t == 0 else f'v[{vO+4*d}:{vO+4*d+3}]'
                a(f'v_mfma_f32_16x16x32_bf16 v[{vO+4*d}:{vO+4*d+3}], v[{f}:{f+3}], v[{vP+4*t}:{vP+4*t+3}], {c}')
                if d < 4: rd(d + 4)
            if t == 0:
                self.vm('xf', f'buffer_load_ushort v{vXF}, v{vC4G}, {sr(SX)}, s{sXO} offen')
                self.w1(cfg['W']['preV2'], vW1X)
                self.vl(2)
            if t == 1:
                self.w1(cfg['W']['preV3'], vW1X)
                self.vl(3)
                self.lds_arrive(7)
                a(f's_setprio {P[3]}')
                self.w1(8, vW1X)
                a('s_setprio 3')
                self.stamp(7)
            if t == 2:
                a(f'v_lshrrev_b32 v78, 4, v{vL}')
                a(f'v_and_b32 v79, 15, v{vL}')
                self.gemv_consts(78, 79, None, 72)
                a(f'v_mul_u32_u24 v{aOWR}, {OSTR}, v79')
                a(f'v_lshl_add_u32 v{aOWR}, v78, 4, v{aOWR}')
                a(f'v_add_u32 v{aOWR}, s{sRINGB}, v{aOWR}')
                a(f's_mul_i32 s{sT0}, s{sV}, {OSTR}')
                a(f'v_add_u32 v{aORD0}, s{sT0}, v{vRED}')
                a(f'v_add_u32 v{aORD1}, {4*RING}, v{aORD0}')
                a(f's_lshl_b32 s{sT0}, s{sV}, 5')
                a(f's_add_u32 s{sT0}, s{sT0}, {L_F}')
                a(f'v_mov_b32 v{aF}, s{sT0}')
                a(f'v_and_b32 v38, 3, v{vL}')
                a(f'v_lshlrev_b32 v38, 4, v38')
                a(f'v_lshrrev_b32 v39, 2, v{vL}')
                a(f's_mov_b32 s{sT0}, {4*PAS}')
                a(f'v_mad_u32_u24 v{vGA4}, v39, s{sT0}, v38')
                a(f'v_lshl_add_u32 v{vG512}, v39, 9, v38')
                a(f'v_lshrrev_b32 v78, 3, v{vL}')
                a(f'v_and_b32 v79, 7, v{vL}')
                a(f'v_lshlrev_b32 v79, 3, v79')
                a(f's_movk_i32 s{sT0}, 768')
                a(f'v_mad_u32_u24 v{vSTG}, v78, s{sT0}, v79')
                a(f'v_and_b32 v79, 1, v39')
                a(f'v_lshl_add_u32 v79, v79, 10, v38')
                a(f'v_lshl_add_u32 v{vCG}, v78, 11, v79')
                a(f'v_lshlrev_b32 v{vXF}, 16, v{vXF}')
                a(f's_add_u32 s{sT0}, s{sV64}, {L_MOD}')
                a(f'v_lshl_add_u32 v{aMOD}, v{vC4G}, 1, s{sT0}')
                a(f'v_lshlrev_b32 v{aW}, 2, v{vL}')
                a(f'v_add_u32 v{aW}, {L_W}, v{aW}')
        self.stamp(8)
        a('s_mov_b32 exec_lo, 0x00ff00ff')
        a('s_mov_b32 exec_hi, 0x00ff00ff')
        for d in range(8):
            a(f'ds_write_b128 v{aOWR}, v[{vO+4*d}:{vO+4*d+3}] offset:{64*d}')
        a('s_mov_b64 exec, -1')
        self.wnext = 0
        xq = list(self.vmq)
        if cfg['W']['preBar']:
            a(f's_cmp_lg_u32 s{sISX}, 0')
            a('s_cbranch_scc1 L_nopre')
            a(f's_setprio {P[3]}')
            self.w1(cfg['W']['preBar'])
            a('s_setprio 3')
            a('L_nopre:')
        a('s_waitcnt lgkmcnt(0)')
        a('s_barrier')
        a(f'ds_read_b128 v[104:107], v{aF}')
        a(f'ds_read_b128 v[108:111], v{aF} offset:16')
        for k in range(4):
            bs = aORD0 if k < 2 else aORD1
            kk = k % 2
            a(f'ds_read2st64_b64 v[{88+4*k}:{91+4*k}], v{bs} offset0:{64*kk} offset1:{64*kk+32}')
        a(f'ds_read_b32 v{vWW}, v{aW}')
        for k, r in enumerate((vM0, vM1, vM2)):
            a(f'ds_read_b32 v{r}, v{aMOD} offset:{512*(k+1)}')
        def pk(op, dst, j):
            fp = 104 + (j & ~1); x = 88 + 2 * j
            if op == 'mul':
                sel = 'op_sel:[0,1] op_sel_hi:[1,1]' if j & 1 else 'op_sel:[0,0] op_sel_hi:[1,0]'
                a(f'v_pk_mul_f32 v[{dst}:{dst+1}], v[{x}:{x+1}], v[{fp}:{fp+1}] {sel}')
            else:
                sel = 'op_sel:[0,1,0] op_sel_hi:[1,1,1]' if j & 1 else 'op_sel:[0,0,0] op_sel_hi:[1,0,1]'
                a(f'v_pk_fma_f32 v[{dst}:{dst+1}], v[{x}:{x+1}], v[{fp}:{fp+1}], v[{dst}:{dst+1}] {sel}')
        a('s_waitcnt lgkmcnt(6)')
        pk('mul', 80, 0); pk('mul', 82, 1); pk('fma', 80, 2); pk('fma', 82, 3)
        a('s_waitcnt lgkmcnt(4)')
        pk('fma', 80, 4); pk('fma', 82, 5); pk('fma', 80, 6); pk('fma', 82, 7)
        a('v_pk_add_f32 v[80:81], v[80:81], v[82:83]')
        a('v_min_u32 v80, -2, v80')
        a('v_min_u32 v81, -2, v81')
        self.vm('st', f'buffer_store_dwordx2 v[80:81], v{vRED}, {sr(SWS)}, s{sPAO} offen sc1')
        self.stamp(9)
        a('s_setprio 0')
        a('s_waitcnt lgkmcnt(0)')
        a(f's_cmp_eq_u32 s{sISX}, 0')
        a('s_cbranch_scc1 L_tail_y')
        save = list(self.vmq)
        self.vmq = xq + ['st']
        G, AF, AC, M = 88, 104, 120, 128
        loads = []
        for n in range(4):
            if n: loads.append(f's_add_u32 s{sT1}, s{sGA}, {64*n*PAS}')
            loads.append(f'buffer_load_dwordx4 v[{G+4*n}:{G+3+4*n}], v{vGA4}, {sr(SWS)}, s{sT1 if n else sGA} offen sc1')
        self.delay('A')
        self.issue('A', loads)
        self.validate('A', loads, range(G, G + 16), sleep=cfg['SLA'], rec=0)
        self.stamp(10)
        for k in range(4): a(f'v_mul_f32_dpp v{G+k}, v{vWW}, v{G+k} quad_perm:[0,0,0,0] {DPP}')
        for n in range(1, 4):
            for k in range(4): a(f'v_fmac_f32_dpp v{G+k}, v{vWW}, v{G+4*n+k} quad_perm:[{n},{n},{n},{n}] {DPP}')
        self.tred(G, M)
        a(f'v_cvt_pk_bf16_f32 v{M}, v{M}, v{M}')
        self.gemv(M, [(40, AC), (56, AC + 4)], AF, wait='w1')
        self.out_write([AC, AC + 4], L_WO)
        a('s_barrier')
        self.red_pub(0, 2, L_WO, sDST, 16384, 8, AF)
        a(f's_cmp_lg_u32 s{sJ}, 15')
        a('s_cbranch_scc1 L_fin')
        a(f's_add_u32 s{sT1}, s{sTB}, 8192')
        loads = [f'buffer_load_dwordx4 v[{G}:{G+3}], v{vG512}, {sr(SWS)}, s{sTB} offen sc1',
                 f'buffer_load_dwordx4 v[{G+4}:{G+7}], v{vG512}, {sr(SWS)}, s{sT1} offen sc1']
        self.delay('B')
        self.issue('B', loads)
        a(f'v_subrev_u32 v{aMOD}, {L_MOD - L_XS}, v{aMOD}')
        a(f's_lshl_b32 s{sT0}, s{sV}, 3')
        a(f's_add_u32 s{sT0}, s{sT0}, {L_XS + 512}')
        a(f'v_mov_b32 v{aW}, s{sT0}')
        a(f's_lshl_b32 s{sT0}, s{sV}, 9')
        a(f's_add_u32 s{sDST2}, s{sDST2}, s{sT0}')
        a(f's_add_u32 s{sT0}, s{sT0}, {L_XS}')
        a(f'v_add_u32 v{aF}, s{sT0}, v{vRED}')
        self.validate('B', loads, range(G, G + 8), sleep=cfg['SL'], rec=1)
        self.stamp(11)
        for k in range(4): a(f'v_add_f32 v{G+k}, v{G+k}, v{G+4+k}')
        self.tred(G, M)
        self.rnd(M, M)
        a(f'v_mul_f32 v{M}, v{M}, v{vM0}')
        self.rnd(M, M)
        a(f'v_add_f32 v{M}, v{M}, v{vXF}')
        self.rnd(vX2, M)
        a(f'ds_write_b32 v{aMOD}, v{vX2}')
        a(f'v_readfirstlane_b32 s{sT0}, v{vX2}')
        a(f'v_subrev_f32 v{M+1}, s{sT0}, v{vX2}')
        a(f'v_mul_f32 v{M+2}, v{M+1}, v{M+1}')
        self.allred('v_add_f32', [M + 1, M + 2], (0, 1, 4, 5), [M + 3, M + 4])
        a(f'v_mul_f32 v{M+3}, 0x3d800000, v{M+1}')
        a(f'v_fma_f32 v{M+5}, -v{M+1}, v{M+3}, v{M+2}')
        a(f'v_add_f32 v{M+4}, s{sT0}, v{M+3}')
        a(f'v_min_u32 v{M+4}, -2, v{M+4}')
        a(f'v_min_u32 v{M+5}, -2, v{M+5}')
        a(f'ds_write_b64 v{aW}, v[{M+4}:{M+5}]')
        a('s_waitcnt lgkmcnt(0)')
        a('s_barrier')
        a(f's_cmp_ge_u32 s{sV}, 2')
        a('s_cbranch_scc1 L_fin')
        a(f's_cmp_eq_u32 s{sV}, 0')
        a(f's_cselect_b32 exec_lo, -1, 0xff')
        a(f's_cselect_b32 exec_hi, -1, 0')
        a(f'ds_read_b64 v[{M+4}:{M+5}], v{aF}')
        a('s_waitcnt lgkmcnt(0)')
        a(f'buffer_store_dwordx2 v[{M+4}:{M+5}], v{vRED}, {sr(SWS)}, s{sDST2} offen sc1')
        a('s_mov_b64 exec, -1')
        self.stamp(12)
        a('s_branch L_fin')
        a('L_tail_y:')
        self.vmq = save
        a(f's_cmp_ge_u32 s{sTEAM}, 14')
        a('s_cbranch_scc1 L_fin')
        G, AF, AC, M = 12, 88, 72, 72
        vWD = 104
        self.w1(8)
        for k in range(4):
            if k == 0: a(f's_mov_b32 s{sT3}, s{sW1B}')
            else: a(f's_add_u32 s{sT3}, s{sW1B}, {4*k*7168}')
            for b in range(2):
                r = 136 + 16 * b + 4 * k
                self.vm('w1', f'buffer_load_dwordx4 v[{r}:{r+3}], v{vW1}, {sr(SU)}, s{sT3} offen offset:{256*b} nt')
        def dn(k0, k1):
            for k in range(k0, k1):
                a(f's_add_u32 s{sT3}, s{sDNB}, {4*k*2048}')
                self.vm('dn', f'buffer_load_dwordx4 v[{vWD+4*k}:{vWD+4*k+3}], v{vW2D}, {sr(SD)}, s{sT3} offen nt')
        dn(0, cfg['W']['dn0'])
        a(f's_mul_i32 s{sT1}, s{sRG}, 768')
        a(f's_add_u32 s{sT1}, s{sT1}, s{sV64}')
        a(f's_add_u32 s{sT1}, s{sT1}, {W_XS}')
        a(f's_mov_b32 s{sT0}, {W_XS + 512}')
        a(f'v_lshlrev_b32 v38, 1, v{vC4G}')
        loads = [f'buffer_load_dwordx2 v[{G}:{G+1}], v{vSTG}, {sr(SWS)}, s{sT0} offen sc1',
                 f'buffer_load_dword v{vX2}, v38, {sr(SWS)}, s{sT1} offen sc1']
        if cfg['YW']: self.vm_wait('w1')
        self.delay('S')
        self.issue('S', loads)
        dn(cfg['W']['dn0'], 8)
        self.stamp(10)
        self.validate('S', loads, (G, G + 1, vX2), sleep=cfg['SLS'], rec=2)
        self.stamp(12)
        a(f'v_readfirstlane_b32 s{sT0}, v{G}')
        a(f'v_subrev_f32 v{G+2}, s{sT0}, v{G}')
        a(f'v_mul_f32 v{G+3}, 0x41800000, v{G+2}')
        a(f'v_fmac_f32 v{G+1}, v{G+3}, v{G+2}')
        self.allred('v_add_f32', [G + 2, G + 1], (0, 1, 3, 2, 4, 5), [G + 4, G + 5])
        a(f'v_mul_f32 v{G+2}, 0x3c800000, v{G+2}')
        a(f'v_mul_f32 v{G+1}, 0x3a800000, v{G+1}')
        a(f'v_fma_f32 v{G+1}, -v{G+2}, v{G+2}, v{G+1}')
        a(f'v_add_f32 v{G+2}, s{sT0}, v{G+2}')
        self.ln_stats(G + 2, G + 1)
        self.ln_apply(G + 4, vX2, G + 2, G + 1, vM1, vM0, G + 3)
        self.gemv(G + 4, [(40, AC), (56, AC + 4), (136, AC + 8), (152, AC + 12)], AF, wait='w1')
        self.out_write([AC, AC + 4, AC + 8, AC + 12], L_GU)
        a('s_barrier')
        self.red_pub(0, 4, L_GU, sDST, 512, 8, AF)
        a(f's_lshl_b32 s{sT0}, s{sV}, 7')
        a(f's_add_u32 s{sT0}, s{sT0}, s{sTB}')
        loads = [f'buffer_load_dwordx4 v[{G+4*hh}:{G+4*hh+3}], v{vCG}, {sr(SWS)}, s{sT0} offen offset:{64*hh} sc1' for hh in range(2)]
        self.delay('C')
        self.issue('C', loads)
        a(f's_mov_b32 s{sSEL}, 0xf0f0f0f0')
        a(f's_mov_b32 s{sSEL+1}, 0xf0f0f0f0')
        self.validate('C', loads, range(G, G + 8), sleep=cfg['SL'], rec=3)
        self.stamp(13)
        self.tred(G, M, bits=(3,))
        self.tred(G + 4, M + 1, bits=(3,))
        self.rnd(M, M); self.rnd(M + 1, M + 1)
        a(f'v_mov_b32_dpp v{M+2}, v{M} row_ror:4 {DPP}')
        a(f'v_mov_b32_dpp v{M+3}, v{M+1} row_ror:4 {DPP}')
        a(f'v_cndmask_b32 v{M+4}, v{M}, v{M+3}, s[{sSEL}:{sSEL+1}]')
        a(f'v_cndmask_b32 v{M+5}, v{M+2}, v{M+1}, s[{sSEL}:{sSEL+1}]')
        self.silu(M + 4, M + 4, M + 6)
        self.rnd(M + 4, M + 4)
        a(f'v_mul_f32 v{M+4}, v{M+4}, v{M+5}')
        a(f'v_cvt_pk_bf16_f32 v{M+4}, v{M+4}, v{M+4}')
        a(f'v_mov_b32_dpp v{M+5}, v{M+4} row_ror:4 {DPP}')
        a(f'v_cndmask_b32 v{G}, v{M+4}, v{M+5}, s[{sSEL}:{sSEL+1}]')
        a(f'v_cndmask_b32 v{G+1}, v{M+5}, v{M+4}, s[{sSEL}:{sSEL+1}]')
        for n in range(4): self.afrag(AF + 4 * n, G, n)
        for n in range(4): self.afrag(40 + 4 * n, G + 1, n)
        self.vm_wait('dn')
        for n in range(4):
            self.mf(AC + 12, AF, vWD, n, n == 0)
            self.mf(56, 40, vWD + 16, n, n == 0)
        for k in range(4): a(f'v_add_f32 v{56+k}, v{56+k}, v{AC+12+k}')
        self.out_write([56], L_DN)
        a('s_barrier')
        self.red_pub(0, 1, L_DN, sDST2, 0, 8, AF)
        a(f's_cmp_lg_u32 s{sTEAM}, s{sRG}')
        a('s_cbranch_scc1 L_fin')
        a(f's_add_u32 s{sT0}, s{sGA}, s{sV64}')
        a(f'v_cmp_lt_u32 vcc, 55, v{vL}')
        a(f'v_mov_b32 v38, {OOB}')
        a(f'v_cndmask_b32 v38, v{vG512}, v38, vcc')
        loads = [f'buffer_load_dwordx4 v[{G}:{G+3}], v38, {sr(SWS)}, s{sT0} offen sc1']
        self.delay('D')
        self.issue('D', loads)
        self.validate('D', loads, range(G, G + 4), sleep=cfg['SL'], rec=4)
        self.stamp(14)
        self.tred(G, M)
        self.rnd(M, M)
        a(f'v_mul_f32 v{M}, v{M}, v{vM2}')
        self.rnd(M, M)
        a(f'v_add_f32 v{M}, v{M}, v{vX2}')
        a(f'v_cvt_pk_bf16_f32 v{M}, v{M}, v{M}')
        a('s_mov_b32 exec_lo, 0x000f000f')
        a('s_mov_b32 exec_hi, 0x000f000f')
        a(f'buffer_store_short v{M}, v{vC4G}, {sr(SO)}, s{sXO} offen')
        a('s_mov_b64 exec, -1')
        a('L_fin:')
        self.finish()


if __name__ == '__main__':
    out = sys.argv[1]
    stamps = sys.argv[2] if len(sys.argv) > 2 and sys.argv[2] != '-' else False
    cfg = json.loads(sys.argv[3]) if len(sys.argv) > 3 else None
    open(out, 'w').write(Gen(stamps=stamps, cfg=cfg).build())
```

```python
import sys, json
from asmlib import *
from hazard import pad

HDR = open('adaLN_cond__gqa_block_cached__swiglu_ffn__decode.s.ref').read().split('\n')
HDR = [l for l in HDR if l.startswith(';') and '@launch' not in l]

E_PM0, E_PQ, LB = 0, 65536, 131072
PAS = 4352
W_PA = LB
W_M12 = W_PA + 256 * PAS
W_PB = W_M12 + 65536
W_XS = W_PB + 131072
W_PC = W_XS + 8192
W_PD = W_PC + 229376
NCLR = 16
CLRW = 3200
assert W_PD + 65536 <= LB + 512 * CLRW
RING = 16384
L_SCR = 131072
L_M, L_Q, L_QB = L_SCR, L_SCR + 2048, L_SCR + 4096
L_ML, L_F, L_CNT, L_W, L_XS, L_MOD = L_SCR + 6400, L_SCR + 6912, L_SCR + 7168, L_SCR + 7424, L_SCR + 7680, L_SCR + 8448
LDS_BYTES = L_MOD + 2048
L_WO, L_GU, L_DN = 8192, RING + 8192, 3 * RING
OSTR, QSTR = 528, 272
LOG2E, SCALE, EPS = 0x3fb8aa3b, 0x3db504f3, 0x3727c5ac
SPIN = 60000
DPP = 'row_mask:0xf bank_mask:0xf'
NVGPR = 168
OOB = 0x20000000

SK, SV, SWQ, SW1, SU, SD, SM, SWS, SX, SC, SO, SDB = 32, 36, 40, 44, 52, 56, 60, 64, 68, 72, 76, 80
def sr(x): return f's[{x}:{x+3}]'
sV = 3
sKVH, sJ, sKB, sX, sRG, sISX, sTEAM, sSPIN = 84, 85, 86, 87, 88, 89, 90, 91
sT0, sT1, sT2, sT3 = 92, 93, 94, 95
sSEL, sE, sTB, sV64 = 96, 98, 100, 101
sB0, sB1, sWID = 14, 15, 23
sRINGB, sH, sW1B, sW1S, sDNB, sXO, sGA, sDST, sPAO = 4, 5, 6, 7, 8, 9, 10, 11, 48
sDST2, sOWN = 49, 50

vT0, vL, vT1, vCNT, vONE, vST = 0, 1, 2, 5, 6, 7
vKO, vV0, vV1 = 2, 3, 4
vK, vBQ, vD0, vD1, vS = 40, 8, 24, 40, 56
vMASK, vTR = 8, 12
vW1X = 23
vGA4, vG512, vW1, vW2D, vRED, vOW, vC4G = 20, 21, 22, 24, 25, 26, 27
vXF, vM0, vM1, vM2, vX2, vSTG, vCG, vWW = 28, 29, 30, 31, 33, 35, 36, 37
vP, vO, vVF = 72, 88, 120


class Gen:
    def __init__(self, stamps=False, cfg=None):
        self.a = Asm()
        self.stamps = stamps
        self.nlab = 0
        self.cfg = dict(KF=2, TD=3, TDV=63, SLH=16, SLC=8, SL=1, SLA=2, SLS=2, NQ0=4, NQ=28, NMOD=4, NML=8, YW=1, PRIO=[3, 2, 1, 0],
                        W={'preV2': 0, 'preV3': 8, 'preBar': 0, 'dn0': 0},
                        D={'H1': 0, 'A': 0, 'B': 8, 'S': 0, 'C': 12, 'D': 12})
        if cfg:
            cfg = dict(cfg)
            for kk in ('D', 'W'):
                if kk in cfg: self.cfg[kk].update(cfg.pop(kk))
            self.cfg.update(cfg)
        self.vmq = []; self.wnext = 0

    def lab(self, s):
        self.nlab += 1
        return f'L_{s}_{self.nlab}'

    def stamp(self, k):
        if not self.stamps: return
        a = self.a
        a(f's_memrealtime s[{sE}:{sE+1}]')
        a('s_waitcnt lgkmcnt(0)')
        a(f'v_writelane_b32 v{vST}, s{sE}, {k}')

    def rnd(self, dst, src):
        a = self.a
        a(f'v_cvt_pk_bf16_f32 v{dst}, v{src}, v{src}')
        a(f'v_and_b32 v{dst}, 0xffff0000, v{dst}')

    def allred(self, op, regs, bits, tmps):
        a = self.a
        for b in bits:
            if b in (0, 1, 2, 3):
                mod = {0: 'quad_perm:[1,0,3,2]', 1: 'quad_perm:[2,3,0,1]', 2: 'row_ror:4', 3: 'row_ror:8'}[b]
                for r in regs: a(f'{op}_dpp v{r}, v{r}, v{r} {mod} {DPP}')
            else:
                ins = 'v_permlane16_swap_b32' if b == 4 else 'v_permlane32_swap_b32'
                for r, t in zip(regs, tmps): a(f'v_mov_b32 v{t}, v{r}')
                for r, t in zip(regs, tmps): a(f'{ins} v{t}, v{r}')
                for r, t in zip(regs, tmps): a(f'{op} v{r}, v{r}, v{t}')

    def tred(self, x, y, bits=(3, 2)):
        a = self.a
        a(f'v_permlane32_swap_b32 v{x}, v{x+2}')
        a(f'v_permlane32_swap_b32 v{x+1}, v{x+3}')
        a(f'v_add_f32 v{x}, v{x}, v{x+2}')
        a(f'v_add_f32 v{x+1}, v{x+1}, v{x+3}')
        a(f'v_permlane16_swap_b32 v{x}, v{x+1}')
        a(f'v_add_f32 v{y}, v{x}, v{x+1}')
        self.allred('v_add_f32', [y], bits, [])

    def afrag(self, dst, xdup, n):
        for d in range(4):
            self.a(f'v_and_b32_dpp v{dst+d}, v{xdup}, v{vMASK+d} quad_perm:[{n},{n},{n},{n}] {DPP}')

    def mf(self, acc, ab, wb, n, first):
        c = '0' if first else f'v[{acc}:{acc+3}]'
        self.a(f'v_mfma_f32_16x16x32_bf16 v[{acc}:{acc+3}], v[{ab+4*n}:{ab+4*n+3}], v[{wb+4*n}:{wb+4*n+3}], {c}')

    def gemv(self, xdup, mats, abase, wait=None):
        for n in range(4): self.afrag(abase + 4 * n, xdup, n)
        if wait: self.vm_wait(wait)
        for n in range(4):
            for wb, acc in mats: self.mf(acc, abase, wb, n, n == 0)

    def out_write(self, accs, lbase):
        a = self.a
        a('s_mov_b32 exec_hi, 0')
        for b, acc in enumerate(accs):
            off = lbase + 4096 * b
            if off < 65536:
                a(f'ds_write_b128 v{vOW}, v[{acc}:{acc+3}] offset:{off}')
            else:
                a(f'v_add_u32 v{vT1}, {off}, v{vOW}')
                a(f'ds_write_b128 v{vT1}, v[{acc}:{acc+3}]')
        a('s_mov_b64 exec, -1')
        a('s_waitcnt lgkmcnt(0)')

    def silu(self, dst, src, t):
        a = self.a
        a(f's_mov_b32 s{sT2}, 0xbfb8aa3b')
        a(f'v_max_f32 v{t+2}, 0xc2b00000, v{src}')
        a(f'v_min_f32 v{t+2}, 0x42c80000, v{t+2}')
        a(f'v_mul_f32 v{t}, s{sT2}, v{t+2}')
        a(f'v_fma_f32 v{t+1}, v{t+2}, s{sT2}, -v{t}')
        a(f'v_fmac_f32 v{t+1}, 0xb2a57060, v{t+2}')
        a(f'v_exp_f32 v{t}, v{t}')
        a(f'v_mul_f32 v{t+1}, 0x3f317218, v{t+1}')
        a(f'v_fmac_f32 v{t}, v{t}, v{t+1}')
        a(f'v_add_f32 v{t}, 1.0, v{t}')
        a(f'v_rcp_f32 v{t+1}, v{t}')
        a(f'v_fma_f32 v{t+2}, -v{t}, v{t+1}, 1.0')
        a(f'v_fmac_f32 v{t+1}, v{t+2}, v{t+1}')
        a(f'v_mul_f32 v{t+2}, v{src}, v{t+1}')
        a(f'v_fma_f32 v{t+3}, -v{t}, v{t+2}, v{src}')
        a(f'v_fmac_f32 v{t+2}, v{t+3}, v{t+1}')
        a(f'v_fma_f32 v{t+3}, -v{t}, v{t+2}, v{src}')
        a(f'v_fma_f32 v{dst}, v{t+3}, v{t+1}, v{t+2}')

    def ln_stats(self, mean, var):
        a = self.a
        self.rnd(var, var)
        a(f'v_add_f32 v{var}, {EPS}, v{var}')
        self.rnd(var, var)
        a(f'v_sqrt_f32 v{var}, v{var}')
        self.rnd(mean, mean)
        self.rnd(var, var)
        a(f'v_rcp_f32 v{var}, v{var}')

    def ln_apply(self, dst, x, mean, rsd, c1, sh, t):
        a = self.a
        a(f'v_sub_f32 v{t}, v{x}, v{mean}')
        self.rnd(t, t)
        a(f'v_mul_f32 v{t}, v{t}, v{rsd}')
        self.rnd(t, t)
        a(f'v_mul_f32 v{t}, v{t}, v{c1}')
        self.rnd(t, t)
        a(f'v_add_f32 v{t}, v{t}, v{sh}')
        a(f'v_cvt_pk_bf16_f32 v{dst}, v{t}, v{t}')

    def vm(self, tag, line):
        self.a(line); self.vmq.append(tag)

    def vm_wait(self, tag):
        idx = [i for i, t in enumerate(self.vmq) if t == tag]
        if not idx: return
        n = len(self.vmq) - 1 - idx[-1]
        self.a(f's_waitcnt vmcnt({min(n,63)})')
        self.vmq = self.vmq[idx[-1] + 1:]

    def lds_arrive(self, k):
        a = self.a
        a('s_waitcnt lgkmcnt(0)')
        a('s_mov_b64 exec, 1')
        a(f'ds_add_u32 v{vCNT}, v{vONE} offset:{4*k}')
        a('s_mov_b64 exec, -1')

    def lds_wait(self, k, n, sleep=0):
        a = self.a
        lr, lo = self.lab('lw'), self.lab('lwok')
        a(f's_mov_b32 s{sSPIN}, 0')
        a(f'{lr}:')
        a(f'ds_read_b32 v{vT0}, v{vCNT} offset:{4*k}')
        a('s_waitcnt lgkmcnt(0)')
        a(f'v_cmp_gt_u32 vcc, {n}, v{vT0}')
        a(f's_cbranch_vccz {lo}')
        a(f's_add_u32 s{sSPIN}, s{sSPIN}, 1')
        a(f's_cmp_gt_u32 s{sSPIN}, {SPIN*16}')
        a('s_cbranch_scc1 L_end')
        if sleep: a(f's_sleep {sleep}')
        a(f's_branch {lr}')
        a(f'{lo}:')

    def check(self, chk):
        a = self.a
        c = list(chk)
        if len(c) == 2:
            a(f'v_max_u32 v{vT0}, v{c[0]}, v{c[1]}'); c = []
        else:
            a(f'v_max3_u32 v{vT0}, v{c[0]}, v{c[1]}, v{c[2]}'); c = c[3:]
        while len(c) >= 2:
            a(f'v_max3_u32 v{vT0}, v{vT0}, v{c[0]}, v{c[1]}'); c = c[2:]
        if c: a(f'v_max_u32 v{vT0}, v{vT0}, v{c[0]}')
        a(f'v_cmp_eq_u32 vcc, -1, v{vT0}')

    def issue(self, tag, loads):
        for l in loads:
            if l.startswith('buffer_'): self.vm(tag, l)
            else: self.a(l)

    def validate(self, tag, loads, chk, sleep=1, rec=None):
        a = self.a
        lr, lo = self.lab('retry'), self.lab('ok')
        self.vm_wait(tag)
        a(f's_mov_b32 s{sSPIN}, 0')
        a(f'{lr}:')
        self.check(chk)
        a(f's_cbranch_vccz {lo}')
        a(f's_add_u32 s{sSPIN}, s{sSPIN}, 1')
        a(f's_cmp_gt_u32 s{sSPIN}, {SPIN}')
        a('s_cbranch_scc1 L_end')
        if sleep: a(f's_sleep {sleep}')
        a('s_mov_b64 exec, vcc')
        for l in loads: a(l)
        a('s_waitcnt vmcnt(0)')
        a(f's_branch {lr}')
        a(f'{lo}:')
        a('s_mov_b64 exec, -1')
        if self.stamps and rec is not None:
            a(f's_add_u32 s{sSPIN}, s{sSPIN}, 1')
            a(f'v_writelane_b32 v{vST}, s{sSPIN}, {16+rec}')

    def red_pub(self, lo, hi, lbase, sdst, blkstride, nparts, t, wait=None):
        a = self.a
        ls = self.lab('nored')
        one = hi - lo == 1
        assert lo == 0
        if one:
            a(f's_cmp_lg_u32 s{sV}, {lo}')
            a(f's_cbranch_scc1 {ls}')
            if wait: self.lds_wait(*wait)
            a(f'v_add_u32 v{vT1}, {lbase}, v{vRED}')
        else:
            a(f's_cmp_ge_u32 s{sV}, {hi}')
            a(f's_cbranch_scc1 {ls}')
            if wait: self.lds_wait(*wait)
            a(f's_lshl_b32 s{sT0}, s{sV}, 12')
            a(f's_add_u32 s{sT0}, s{sT0}, {lbase}')
            a(f'v_add_u32 v{vT1}, s{sT0}, v{vRED}')
        for k in range(nparts // 2):
            a(f'ds_read2st64_b64 v[{t+4*k}:{t+4*k+3}], v{vT1} offset0:{2*k} offset1:{2*k+1}')
        so = sdst
        if not one:
            a(f's_mul_i32 s{sT0}, s{sV}, {blkstride}')
            a(f's_add_u32 s{sT0}, s{sT0}, s{sdst}')
            so = sT0
        pk = lambda x, y: a(f'v_pk_add_f32 v[{x}:{x+1}], v[{x}:{x+1}], v[{y}:{y+1}]')
        if nparts == 8:
            a('s_waitcnt lgkmcnt(2)')
            pk(t, t + 2); pk(t + 4, t + 6)
            a('s_waitcnt lgkmcnt(0)')
            pk(t + 8, t + 10); pk(t + 12, t + 14); pk(t, t + 4); pk(t + 8, t + 12); pk(t, t + 8)
        else:
            a('s_waitcnt lgkmcnt(0)')
            pk(t, t + 2); pk(t + 4, t + 6); pk(t, t + 4)
        a(f'v_min_u32 v{t}, -2, v{t}')
        a(f'v_min_u32 v{t+1}, -2, v{t+1}')
        a(f'buffer_store_dwordx2 v[{t}:{t+1}], v{vRED}, {sr(SWS)}, s{so} offen sc1')
        a(f'{ls}:')

    def kl(self, j0, j1, depth=63):
        a = self.a
        for j in range(j0, j1):
            t, u, hf = j // 8, (j % 8) // 2, j % 2
            if j % 4 == 0 or j == j0:
                a(f's_add_u32 s{sT3}, s{sKB}, {t*512*8192 + (u//2)*4096}')
            if depth < 63 and len(self.vmq) >= depth: a(f's_waitcnt vmcnt({depth-1})')
            r = vK + 4 * j
            self.vm(f'K{t}', f'buffer_load_dwordx4 v[{r}:{r+3}], v{vKO}, {sr(SK)}, s{sT3} offen offset:{(u%2)*2048+hf*128} nt')

    def vl(self, t, depth=63):
        a = self.a
        for e in range(8):
            if e % 4 == 0:
                a(f's_add_u32 m0, s{sRINGB}, {(t%2)*8192 + (e//4)*4096}')
                a(f's_add_u32 s{sT3}, s{sKB}, {t*512*8192 + (e//4)*4096}')
            if depth < 63 and len(self.vmq) >= depth: a(f's_waitcnt vmcnt({depth-1})')
            vo = vV0 if e % 2 == 0 else vV1
            self.vm(f'V{t}', f'buffer_load_dwordx4 v{vo}, {sr(SV)}, s{sT3} offen offset:{(e%4)*1024} nt lds')

    def delay(self, name):
        n = self.cfg['D'].get(name, 0)
        while n > 0:
            self.a(f's_sleep {min(n,127)}'); n -= 127

    def gemv_consts(self, g, i, c, t):
        a = self.a
        a(f'v_lshrrev_b32 v{t}, 1, v{i}')
        a(f'v_and_b32 v{t+1}, 1, v{i}')
        a(f'v_lshlrev_b32 v{t+1}, 4, v{t+1}')
        a(f'v_mov_b32 v{t+2}, 0xffff')
        a(f'v_lshlrev_b32 v{t+1}, v{t+1}, v{t+2}')
        for d in range(4):
            a(f'v_cmp_eq_u32 vcc, {d}, v{t}')
            a(f'v_cndmask_b32 v{vMASK+d}, 0, v{t+1}, vcc')
        a(f'v_lshlrev_b32 v{vRED}, 3, v{vL}')
        a(f's_lshl_b32 s{sT0}, s{sV}, 9')
        a(f'v_lshlrev_b32 v{vOW}, 5, v{i}')
        a(f'v_lshl_add_u32 v{vOW}, v{g}, 4, v{vOW}')
        a(f'v_add_u32 v{vOW}, s{sT0}, v{vOW}')

    def finish(self):
        a = self.a
        if self.cfg.get('T0') and not getattr(self, 'in_chain', False):
            l = self.lab('diag')
            a(f'{l}:')
            a('s_memrealtime s[92:93]'); a('s_waitcnt lgkmcnt(0)')
            a(f's_sub_u32 s92, s92, s{sE}')
            a(f's_cmp_lt_u32 s92, {self.cfg["T0"]}')
            a(f's_cbranch_scc1 {l}')
        if self.stamps:
            a('s_waitcnt vmcnt(0)')
            self.stamp(15)
            a(f's_mul_i32 s{sT0}, s2, 12')
            a(f's_add_u32 s{sT0}, s{sT0}, s{sWID}')
            a(f's_lshl_b32 s{sT0}, s{sT0}, 7')
            a(f's_add_u32 s{sT0}, s{sT0}, {128<<20}')
            a(f'v_lshlrev_b32 v{vT0}, 2, v{vL}')
            a('s_mov_b32 exec_hi, 0')
            a(f'buffer_store_dword v{vST}, v{vT0}, {sr(SWS)}, s{sT0} offen')
        a('s_endpgm')

    def sum_halves(self, b, n):
        a = self.a
        step = 1
        while step < n:
            for q in range(0, n, 2 * step):
                for k in range(4): a(f'v_add_f32 v{b+4*q+k}, v{b+4*q+k}, v{b+4*(q+step)+k}')
            step *= 2
        a(f'v_permlane32_swap_b32 v{b}, v{b+2}')
        a(f'v_permlane32_swap_b32 v{b+1}, v{b+3}')
        a(f'v_add_f32 v{b}, v{b}, v{b+2}')
        a(f'v_add_f32 v{b+1}, v{b+1}, v{b+3}')

    def sfix(self, t):
        a = self.a
        d = vD1 if t & 1 else vD0
        for r in range(4):
            a(f'v_cndmask_b32 v{d+r}, v{d+4+r}, v{d+r}, s[{sSEL}:{sSEL+1}]')
            a(f'v_cndmask_b32 v{d+8+r}, v{d+12+r}, v{d+8+r}, s[{sSEL}:{sSEL+1}]')
        for r in range(4): a(f'v_permlane32_swap_b32 v{d+r}, v{d+8+r}')
        s = vS + 4 * t
        for r in range(4): a(f'v_add_f32_dpp v{s+r}, v{d+8+r}, v{d+r} row_ror:8 {DPP}')
        for h in range(2):
            x, y = s + 2 * h, s + 2 * h + 1
            a(f'v_cvt_pk_bf16_f32 v{y}, v{x}, v{y}')
            a(f'v_lshlrev_b32 v{x}, 16, v{y}')
            a(f'v_and_b32 v{y}, 0xffff0000, v{y}')
            a(f'v_mul_f32 v{x}, {SCALE}, v{x}')
            a(f'v_mul_f32 v{y}, {SCALE}, v{y}')
            a(f'v_cvt_pk_bf16_f32 v{y}, v{x}, v{y}')
            a(f'v_lshlrev_b32 v{x}, 16, v{y}')
            a(f'v_and_b32 v{y}, 0xffff0000, v{y}')

    def base(self, d, b):
        self.a(f's_mov_b32 s{d}, s{b}'); self.a(f's_and_b32 s{d+1}, s{b+1}, 0xffff')

    def build(self):
        a = self.a
        for l in HDR: a(l)
        header(a, 256, 768, LDS_BYTES, '; @stamps 12 16' if self.stamps else '')
        a('s_cmp_ge_u32 s2, 256')
        a('s_cbranch_scc1 L_end')
        if self.cfg.get('T0'): a(f's_memrealtime s[{sE}:{sE+1}]')
        a('s_load_dwordx16 s[4:19], s[0:1], 0')
        a('s_load_dwordx8 s[20:27], s[0:1], 64')
        a('s_load_dwordx4 s[28:31], s[0:1], 96')
        a(f'v_lshrrev_b32 v2, 6, v0')
        a(f'v_and_b32 v{vL}, 63, v0')
        a(f'v_readfirstlane_b32 s{sV}, v2')
        if self.stamps: a(f'v_mov_b32 v{vST}, 0')
        a(f'v_lshrrev_b32 v32, 4, v{vL}')
        a(f'v_and_b32 v33, 15, v{vL}')
        a(f'v_mov_b32 v{vCNT}, {L_CNT}')
        a(f'v_mov_b32 v{vONE}, 1')
        a(f's_and_b32 s{sKVH}, s2, 3')
        a(f's_and_b32 s{sX}, s2, 7')
        a(f's_bfe_u32 s{sRG}, s2, 0x30003')
        a(f's_bfe_u32 s{sJ}, s2, 0x40003')
        a(f's_lshr_b32 s{sISX}, s2, 7')
        for d, n in ((SK, 64 << 20), (SM, 12 << 20), (SC, 2048), (SWS, 256 << 20), (SX, 2048), (SWQ, 8 << 20), (SDB, 256), (SV, 64 << 20)):
            a(f's_mov_b32 s{d+2}, {n}'); a(f's_mov_b32 s{d+3}, 0x20000')
        a(f's_cmp_lt_u32 s{sV}, 4')
        a('s_cbranch_scc1 L_chain')
        self.attention()
        a('L_chain:')
        self.chain()
        a('L_end:')
        a('s_endpgm')
        footer(a, NVGPR, NVGPR, 102)
        pol = self.cfg.get('POL', {})
        out = []
        for l in a.l:
            if l.startswith('buffer_load') and ' nt' in l:
                key = 'K' if sr(SK) in l else 'V' if sr(SV) in l else 'H' if (sr(SM) in l or sr(SWQ) in l) else 'T'
                l = l.replace(' nt', (' ' + pol.get(key, 'nt')).rstrip())
            out.append(l)
        a.l = out
        return pad(a.text())

    def cnt_check(self):
        a = self.a
        lo, lr = self.lab('cntok'), self.lab('cnt')
        for k in range(4):
            if k: a(f's_sleep {self.cfg["SLC"]}')
            a(f's_load_dword s{sT0}, s[28:29], {64*k}')
            a('s_waitcnt lgkmcnt(0)')
            a(f's_cmp_ge_u32 s{sT0}, 16')
            a(f's_cbranch_scc1 {lo}')
        a(f's_mov_b32 s{sSPIN}, 0')
        a('v_mov_b32 v12, 0')
        a(f'{lr}:')
        a(f's_sleep {self.cfg["SLH"]}')
        a(f'buffer_load_dword v13, v12, {sr(SDB)}, 0 offen sc1')
        a('s_waitcnt vmcnt(0)')
        a('v_cmp_gt_u32 vcc, 16, v13')
        a(f's_cbranch_vccz {lo}')
        a(f's_add_u32 s{sSPIN}, s{sSPIN}, 1')
        a(f's_cmp_gt_u32 s{sSPIN}, {SPIN}')
        a('s_cbranch_scc1 L_end')
        a(f's_branch {lr}')
        a(f'{lo}:')

    def init_barrier(self):
        a = self.a
        l = self.lab('noinit')
        a(f's_cmp_lg_u32 s{sV}, 0')
        a(f's_cbranch_scc1 {l}')
        a(f'v_mov_b32 v12, 0')
        a(f'v_lshl_add_u32 v13, v{vL}, 2, v{vCNT}')
        a('s_mov_b64 exec, 0xffff')
        a('ds_write_b32 v13, v12')
        a('s_mov_b64 exec, -1')
        a('s_waitcnt lgkmcnt(0)')
        a(f'{l}:')
        a('s_barrier')

    def chain(self):
        a = self.a; cfg = self.cfg
        self.in_chain = True
        a('s_setprio 3')
        a(f'v_and_b32 v34, 3, v{vL}')
        a(f'v_lshlrev_b32 v36, 4, v33')
        a(f'v_mul_u32_u24 v37, 12288, v32')
        a(f'v_add_u32 v37, v37, v36')
        a(f'v_lshl_add_u32 v38, v32, 13, v36')
        a(f'v_lshl_add_u32 v{vC4G}, v34, 2, v32')
        a(f'v_lshlrev_b32 v{vC4G}, 1, v{vC4G}')
        a(f'v_lshlrev_b32 v39, 4, v{vL}')
        a(f's_cmp_lg_u32 s{sISX}, 0')
        a('s_cbranch_scc1 L_chain_x')
        self.vmq = []
        a(f's_lshr_b32 s{sT0}, s{sJ}, 1')
        a(f's_lshl_b32 s{sT1}, s{sT0}, 7')
        a(f's_lshl_b32 s{sT2}, s{sV}, 5')
        a(f's_add_u32 s{sT1}, s{sT1}, s{sT2}')
        a(f's_lshl_b32 s{sT3}, s{sT1}, 1')
        a(f's_mul_i32 s{sKB}, s{sT1}, 12288')
        a(f's_lshl_b32 s{sT1}, s{sKVH}, 1')
        a(f's_lshr_b32 s{sT2}, s{sX}, 2')
        a(f's_add_u32 s{sT1}, s{sT1}, s{sT2}')
        a(f's_and_b32 s{sT2}, s{sJ}, 1')
        a(f's_lshl_b32 s{sT2}, s{sT2}, 3')
        a(f's_add_u32 s{sT1}, s{sT1}, s{sT2}')
        a(f's_lshl_b32 s{sT2}, s{sT1}, 8')
        a(f's_add_u32 s{sKB}, s{sKB}, s{sT2}')
        a(f's_lshl_b32 s{sT1}, s{sT1}, 3')
        a(f's_add_u32 s{sT1}, s{sT1}, s{sT0}')
        a(f's_lshl_b32 s{sDST2}, s{sT1}, 9')
        a(f's_lshr_b32 s{sT0}, s{sX}, 2')
        a(f's_lshl_b32 s{sT0}, s{sT0}, 4')
        a(f's_add_u32 s{sT0}, s{sT0}, s{sJ}')
        a(f's_lshl_b32 s{sT1}, s{sT0}, 2')
        a(f's_add_u32 s{sT1}, s{sT1}, s{sKVH}')
        a(f's_lshl_b32 s{sT1}, s{sT1}, 9')
        a(f's_add_u32 s{sOWN}, s{sT1}, {E_PQ}')
        a(f's_lshl_b32 s{sT0}, s{sT0}, 8')
        a(f's_lshl_b32 s{sT1}, s{sKVH}, 21')
        a(f's_add_u32 s{sT0}, s{sT0}, s{sT1}')
        a(f's_lshl_b32 s{sT1}, s{sV}, 19')
        a(f's_add_u32 s{sTB}, s{sT0}, s{sT1}')
        a('s_waitcnt lgkmcnt(0)')
        self.stamp(0)
        self.base(SC, 22); self.base(SM, 24)
        self.vm('c', f'buffer_load_ushort v16, v{vC4G}, {sr(SC)}, s{sT3} offen')
        self.vm('c', f'buffer_load_ushort v17, v{vC4G}, {sr(SC)}, s{sT3} offen offset:32')
        for n in range(8):
            self.vm('wm0', f'buffer_load_dwordx4 v[{40+4*n}:{43+4*n}], v37, {sr(SM)}, s{sKB} offen nt')
            if n < 7: a(f's_add_u32 s{sKB}, s{sKB}, {4*12288}')
        self.base(SX, 4); self.base(SWQ, 10); self.base(SWS, 30); self.base(SDB, 28)
        a(f's_mov_b32 s{sWID}, s{sV}')
        a(f's_lshl_b32 s{sT0}, s2, 2')
        a(f's_add_u32 s{sT0}, s{sT0}, s{sV}')
        a(f's_mul_i32 s{sT0}, s{sT0}, {CLRW}')
        a(f's_add_u32 s{sT0}, s{sT0}, {LB}')
        for k in range(4): a(f'v_mov_b32 v{28+k}, -1')
        for k in range(4):
            if k == 3: a(f's_mov_b64 exec, {(1 << ((CLRW - 3072) // 16)) - 1}')
            self.vm('clr', f'buffer_store_dwordx4 v[28:31], v39, {sr(SWS)}, s{sT0} offen offset:{1024*k} sc1')
        a('s_mov_b64 exec, -1')
        self.init_barrier()
        a(f'v_lshlrev_b32 v35, 5, v{vL}')
        self.vm('x', f'buffer_load_dwordx4 v[136:139], v35, {sr(SX)}, 0 offen')
        self.vm('x', f'buffer_load_dwordx4 v[140:143], v35, {sr(SX)}, 0 offen offset:16')
        a(f's_lshl_b32 s{sT0}, s{sKVH}, 9')
        a(f's_lshl_b32 s{sT1}, s{sV}, 7')
        a(f's_add_u32 s{sT0}, s{sT0}, s{sT1}')
        for k in range(4):
            self.vm('x', f'buffer_load_ushort v{20+k}, v{vC4G}, {sr(SX)}, s{sT0} offen offset:{32*k}')
        def wq(n0, n1):
            for n in range(n0, n1):
                a(f's_add_u32 s{sT2}, s{sTB}, {4*n*8192}')
                self.vm('wq', f'buffer_load_dwordx4 v[{72+4*n}:{75+4*n}], v38, {sr(SWQ)}, s{sT2} offen nt')
        self.gemv_consts(32, 33, 34, 12)
        self.vm_wait('c')
        for k in range(2):
            a(f'v_lshlrev_b32 v{16+k}, 16, v{16+k}')
            self.silu(16 + k, 16 + k, 12)
            a(f'v_cvt_pk_bf16_f32 v{16+k}, v{16+k}, v{16+k}')
        for n in range(4): self.afrag(144 + 4 * n, 16, n)
        self.vm_wait('wm0')
        for n in range(4): self.mf(160, 144, 40, n, n == 0)
        for n in range(4): self.afrag(144 + 4 * n, 17, n)
        for n in range(4): self.mf(160, 144, 56, n, False)
        self.stamp(1)
        self.out_write([160], L_M)
        a('s_waitcnt vmcnt(0)')
        self.vmq = []
        self.lds_arrive(0)
        a(f's_cmp_lg_u32 s{sV}, 0')
        a('s_cbranch_scc1 L_y_nocnt')
        self.cnt_check()
        self.lds_arrive(1)
        self.stamp(7)
        a('L_y_nocnt:')
        self.red_pub(0, 1, L_M, sDST2, 0, 4, 12, wait=(0, 4))
        self.stamp(2)
        wq(0, 16)
        self.vm_wait('x')
        for k in range(8):
            a(f'v_lshlrev_b32 v{144+2*k}, 16, v{136+k}')
            a(f'v_and_b32 v{145+2*k}, 0xffff0000, v{136+k}')
        a('v_add_f32 v28, v144, v145')
        for k in range(2, 16): a(f'v_add_f32 v28, v28, v{144+k}')
        self.allred('v_add_f32', [28], (0, 1, 3, 2, 4, 5), [12])
        a(f'v_mul_f32 v28, 0x3a800000, v28')
        for k in range(16): a(f'v_sub_f32 v{144+k}, v{144+k}, v28')
        a('v_mul_f32 v29, v144, v144')
        for k in range(1, 16): a(f'v_fmac_f32 v29, v{144+k}, v{144+k}')
        self.allred('v_add_f32', [29], (0, 1, 3, 2, 4, 5), [12])
        a(f'v_mul_f32 v29, 0x3a800000, v29')
        self.ln_stats(28, 29)
        for k in range(4): a(f'v_lshlrev_b32 v{20+k}, 16, v{20+k}')
        a(f'v_lshrrev_b32 v12, 3, v{vL}')
        a(f'v_lshlrev_b32 v12, 9, v12')
        a(f'v_bfe_u32 v13, v{vL}, 2, 1')
        a(f'v_lshl_add_u32 v12, v13, 15, v12')
        a(f'v_lshl_add_u32 v30, v34, 4, v12')
        a(f's_lshl_b32 s{sT0}, s{sKVH}, 1')
        a(f's_lshr_b32 s{sT1}, s{sV}, 1')
        a(f's_add_u32 s{sT0}, s{sT0}, s{sT1}')
        a(f's_lshl_b32 s{sT0}, s{sT0}, 12')
        a(f's_and_b32 s{sT1}, s{sV}, 1')
        a(f's_lshl_b32 s{sT1}, s{sT1}, 8')
        a(f's_add_u32 s{sB0}, s{sT0}, s{sT1}')
        loads = [f'buffer_load_dwordx4 v[{40+4*n}:{43+4*n}], v30, {sr(SWS)}, s{sB0} offen offset:{64*n} sc1' for n in range(4)]
        self.vm_wait('wq')
        self.lds_wait(1, 1)
        self.delay('H1')
        self.issue('h1', loads)
        self.validate('h1', loads, range(40, 56), sleep=cfg['SLH'], rec=0)
        self.stamp(3)
        a(f's_mov_b32 s{sSEL}, 0xf0f0f0f0')
        a(f's_mov_b32 s{sSEL+1}, 0xf0f0f0f0')
        for hh in range(4):
            self.tred(40 + 4 * hh, 136, bits=(3,))
            self.rnd(136, 136)
            a(f'v_mov_b32_dpp v137, v136 row_ror:4 {DPP}')
            a(f'v_cndmask_b32 v138, v136, v137, s[{sSEL}:{sSEL+1}]')
            a(f'v_cndmask_b32 v139, v137, v136, s[{sSEL}:{sSEL+1}]')
            a('v_add_f32 v139, 1.0, v139')
            self.rnd(139, 139)
            self.ln_apply(140, 20 + hh, 28, 29, 139, 138, 141)
            for n in range(4): self.afrag(144 + 4 * n, 140, n)
            for n in range(4): self.mf(160, 144, 72 + 16 * hh, n, n == 0 and hh == 0)
        self.out_write([160], L_Q)
        self.lds_arrive(2)
        self.red_pub(0, 1, L_Q, sOWN, 0, 4, 12, wait=(2, 4))
        self.stamp(4)
        a('s_branch L_h2')
        a('L_chain_x:')
        self.vmq = []
        a(f's_and_b32 s{sT0}, s2, 127')
        a(f's_lshl_b32 s{sT1}, s{sT0}, 9')
        a(f's_add_u32 s{sDST2}, s{sT1}, {W_M12}')
        a(f's_lshl_b32 s{sT1}, s{sKVH}, 8')
        a(f's_lshl_b32 s{sT2}, s{sV}, 6')
        a(f's_add_u32 s{sT1}, s{sT1}, s{sT2}')
        a(f's_lshl_b32 s{sT3}, s{sT1}, 1')
        a(f's_mul_i32 s{sKB}, s{sT1}, 12288')
        a(f's_lshr_b32 s{sT1}, s{sT0}, 2')
        a(f's_lshl_b32 s{sT1}, s{sT1}, 8')
        a(f's_add_u32 s{sKB}, s{sKB}, s{sT1}')
        a(f's_add_u32 s{sKB}, s{sKB}, 4096')
        a('s_waitcnt lgkmcnt(0)')
        self.stamp(0)
        self.base(SWS, 30); self.base(SDB, 28); self.base(SC, 22); self.base(SM, 24)
        a(f's_mov_b32 s{sWID}, s{sV}')
        self.init_barrier()
        for k in range(4):
            self.vm('c', f'buffer_load_ushort v{16+k}, v{vC4G}, {sr(SC)}, s{sT3} offen offset:{32*k}')
        for n in range(16):
            self.vm(f'wm{n//4}', f'buffer_load_dwordx4 v[{40+4*n}:{43+4*n}], v37, {sr(SM)}, s{sKB} offen nt')
            if n < 15: a(f's_add_u32 s{sKB}, s{sKB}, {4*12288}')
        self.gemv_consts(32, 33, 34, 12)
        self.vm_wait('c')
        for k in range(4):
            a(f'v_lshlrev_b32 v{16+k}, 16, v{16+k}')
            self.silu(16 + k, 16 + k, 12)
            a(f'v_cvt_pk_bf16_f32 v{16+k}, v{16+k}, v{16+k}')
        for k in range(4):
            for n in range(4): self.afrag(144 + 4 * n, 16 + k, n)
            self.vm_wait(f'wm{k}')
            for n in range(4): self.mf(160, 144, 40 + 16 * k, n, n == 0 and k == 0)
        self.out_write([160], L_M)
        self.lds_arrive(0)
        self.stamp(2)
        self.cnt_check()
        a('L_h2:')
        self.vmq = []
        a(f'v_lshrrev_b32 v32, 5, v{vL}')
        a(f'v_and_b32 v33, 31, v{vL}')
        a(f'v_lshlrev_b32 v34, 4, v33')
        a(f'v_lshl_add_u32 v37, v32, 3, v34')
        a(f'v_lshrrev_b32 v38, 1, v37')
        a(f's_mul_i32 s{sT0}, s{sV}, {2*QSTR}')
        a(f's_add_u32 s{sT0}, s{sT0}, {L_QB}')
        a(f'v_add_u32 v38, s{sT0}, v38')
        a(f's_lshl_b32 s{sT0}, s{sV}, 9')
        a(f's_add_u32 s{sT0}, s{sT0}, {L_MOD}')
        a(f'v_add_u32 v37, s{sT0}, v37')
        a(f's_lshl_b32 s{sT0}, s{sKVH}, 2')
        a(f's_add_u32 s{sT0}, s{sT0}, s{sV}')
        a(f's_lshl_b32 s{sT0}, s{sT0}, 12')
        a(f's_add_u32 s{sB0}, s{sT0}, {E_PQ}')
        loads = [f'buffer_load_dwordx4 v[{40+4*n}:{43+4*n}], v39, {sr(SWS)}, s{sB0} offen offset:{1024*n} sc1' for n in range(4)]
        self.lds_wait(6, 1, sleep=4)
        self.issue('h2', loads)
        self.validate('h2', loads, range(40, 56), sleep=cfg['SLH'], rec=1)
        for hh in range(2):
            b = 40 + 8 * hh
            self.sum_halves(b, 2)
            a(f'v_cvt_pk_bf16_f32 v{b}, v{b}, v{b+1}')
            a(f'ds_write_b32 v38, v{b} offset:{QSTR*hh}')
        self.lds_arrive(3)
        self.stamp(5)
        a(f's_cmp_eq_u32 s{sV}, 0')
        a('s_cbranch_scc1 L_g0')
        a(f's_lshl_b32 s{sT0}, s{sV}, 3')
        a(f's_add_u32 s{sT0}, s{sT0}, s{sRG}')
        a(f's_cmp_eq_u32 s{sISX}, 0')
        a('s_cbranch_scc1 L_modgo')
        a(f's_cmp_lg_u32 s{sJ}, 15')
        a('s_cbranch_scc1 L_chain_fin')
        a(f's_cmp_lg_u32 s{sV}, 1')
        a('s_cbranch_scc1 L_chain_fin')
        a(f's_mov_b32 s{sT0}, s{sX}')
        a('L_modgo:')
        a(f's_lshl_b32 s{sT0}, s{sT0}, 11')
        a(f's_add_u32 s{sB0}, s{sT0}, {W_M12}')
        modl = [f'buffer_load_dwordx4 v[{56+4*n}:{59+4*n}], v39, {sr(SWS)}, s{sB0} offen offset:{1024*n} sc1' for n in range(2)]
        self.lds_wait(4, cfg['NMOD'], sleep=8)
        self.issue('mod', modl)
        self.validate('mod', modl, range(56, 64), sleep=cfg['SLH'], rec=2)
        self.sum_halves(56, 2)
        self.rnd(56, 56); self.rnd(57, 57)
        a(f's_cmp_lg_u32 s{sV}, 2')
        a('s_cbranch_scc1 L_nocb')
        a('v_add_f32 v56, 1.0, v56')
        a('v_add_f32 v57, 1.0, v57')
        self.rnd(56, 56); self.rnd(57, 57)
        a('L_nocb:')
        a('ds_write_b64 v37, v[56:57]')
        a('s_branch L_chain_fin')
        a('L_g0:')
        a(f's_cmp_eq_u32 s{sISX}, 0')
        a('s_cbranch_scc1 L_chain_fin')
        self.vmq = []
        self.red_pub(0, 1, L_M, sDST2, 0, 4, 12, wait=(0, 4))
        a(f's_lshr_b32 s{sT0}, s{sX}, 2')
        a(f's_lshl_b32 s{sT0}, s{sT0}, 2')
        a(f's_lshr_b32 s{sT1}, s{sJ}, 2')
        a(f's_add_u32 s{sT0}, s{sT0}, s{sT1}')
        a(f's_lshl_b32 s{sT0}, s{sT0}, 3')
        a(f's_mul_i32 s{sT1}, s{sKVH}, {PAS}')
        a(f's_add_u32 s{sT0}, s{sT0}, s{sT1}')
        a(f's_add_u32 s{sB0}, s{sT0}, {W_PA + 4096}')
        a(f'v_and_b32 v20, 3, v{vL}')
        a(f'v_lshrrev_b32 v21, 2, v{vL}')
        a(f'v_lshl_add_u32 v20, v20, 4, v21')
        a(f'v_mul_u32_u24 v20, {4*PAS}, v20')
        mll = [f'buffer_load_dwordx2 v[22:23], v20, {sr(SWS)}, s{sB0} offen sc1']
        self.lds_wait(7, cfg['NML'], sleep=8)
        self.issue('ml', mll)
        self.validate('ml', mll, (22, 23), sleep=cfg['SLH'], rec=3)
        a('v_mov_b32 v16, v22')
        self.allred('v_max_f32', [16], (0, 1, 3, 2, 4, 5), [17])
        a('v_sub_f32 v22, v22, v16')
        a(f'v_mul_f32 v22, {LOG2E}, v22')
        a('v_exp_f32 v22, v22')
        a('v_mul_f32 v23, v23, v22')
        self.allred('v_add_f32', [23], (0, 1, 3, 2, 4, 5), [17])
        a('v_rcp_f32 v23, v23')
        a(f'v_lshlrev_b32 v16, 2, v{vL}')
        a(f'v_add_u32 v16, {L_W}, v16')
        a('v_mul_f32 v22, v22, v23')
        a('ds_write_b32 v16, v22')
        self.stamp(6)
        a('L_chain_fin:')
        a('s_waitcnt lgkmcnt(0)')
        self.finish()

    def w1(self, n, vo=None):
        a = self.a
        for _ in range(n):
            j = self.wnext
            if j >= 8: return
            self.wnext += 1
            k, b = j // 2, j % 2
            if b == 0 or _ == 0:
                if k == 0: a(f's_mov_b32 s{sT3}, s{sW1B}')
                else:
                    a(f's_mul_i32 s{sT3}, s{sW1S}, {k}'); a(f's_add_u32 s{sT3}, s{sT3}, s{sW1B}')
            r = 40 + 16 * b + 4 * k
            self.vm('w1', f'buffer_load_dwordx4 v[{r}:{r+3}], v{vo or vW1}, {sr(SW1)}, s{sT3} offen offset:{256*b} nt')

    def attention(self):
        a = self.a; cfg = self.cfg
        KF = cfg['KF']; P = cfg['PRIO']
        self.vmq = []
        a(f's_mov_b32 s{sSPIN}, s{sV}')
        a(f's_sub_u32 s{sV}, s{sV}, 4')
        a(f'v_and_b32 v34, 7, v{vL}')
        a(f'v_lshlrev_b32 v{vKO}, 8, v34')
        a(f'v_lshl_add_u32 v{vKO}, v32, 4, v{vKO}')
        a(f'v_bfe_u32 v34, v{vL}, 3, 1')
        a(f'v_lshl_add_u32 v{vKO}, v34, 6, v{vKO}')
        a(f's_lshr_b32 s{sT0}, s2, 2')
        a(f's_lshl_b32 s{sT0}, s{sT0}, 3')
        a(f's_add_u32 s{sT0}, s{sT0}, s{sV}')
        a(f's_lshl_b32 s{sT0}, s{sT0}, 13')
        a(f's_lshl_b32 s{sKB}, s{sKVH}, 24')
        a(f's_add_u32 s{sKB}, s{sKB}, s{sT0}')
        a(f'v_lshlrev_b32 v39, 4, v{vL}')
        for k in range(4): a(f'v_mov_b32 v{28+k}, -1')
        a(f's_sub_u32 s{sT1}, s2, 128')
        a(f's_lshl_b32 s{sT2}, s{sV}, 8')
        a(f's_add_u32 s{sT2}, s{sT2}, s{sT1}')
        a(f's_lshl_b32 s{sT1}, s{sT1}, 13')
        a('s_waitcnt lgkmcnt(0)')
        self.stamp(0)
        self.base(SWS, 30); self.base(SK, 6); self.base(SDB, 28)
        a(f's_cmp_ge_u32 s{sT2}, 16')
        a('s_cbranch_scc1 L_noearly')
        a('s_setprio 3')
        for k in range(8):
            if k == 4: a(f's_add_u32 s{sT1}, s{sT1}, 4096')
            a(f'buffer_store_dwordx4 v[28:31], v39, {sr(SWS)}, s{sT1} offen offset:{(k%4)*1024} sc1')
        a(f'v_lshlrev_b32 v38, 6, v{vL}')
        a('s_mov_b64 exec, 15')
        a('s_waitcnt vmcnt(0)')
        a(f'buffer_atomic_add v{vONE}, v38, {sr(SDB)}, 0 offen sc1')
        a('s_mov_b64 exec, -1')
        self.stamp(1)
        a('L_noearly:')
        self.kl(0, KF)
        a('s_barrier')
        self.base(SV, 8); self.base(SX, 4)
        a(f's_cmp_lg_u32 s{sISX}, 0')
        a(f's_cselect_b32 s{SW1}, s12, s16')
        a(f's_cselect_b32 s{SW1+1}, s13, s17')
        a(f's_mov_b32 s{SW1+2}, {7<<20}')
        a(f's_cselect_b32 s{SW1+2}, {8<<20}, s{SW1+2}')
        a(f's_and_b32 s{SW1+1}, s{SW1+1}, 0xffff')
        a(f's_mov_b32 s{SW1+3}, 0x20000')
        srd(a, SU, 18, 7 << 20); srd(a, SD, 20, 7 << 20); srd(a, SO, 26, 2048)
        a(f's_mov_b32 s{sWID}, s{sSPIN}')
        for par, reg in ((0, vV0), (1, vV1)):
            a(f'v_lshlrev_b32 v34, 1, v32')
            if par: a(f'v_add_u32 v34, 8, v34')
            a(f'v_xor_b32 v34, v34, v33')
            a(f'v_lshlrev_b32 v34, 4, v34')
            a(f'v_lshl_add_u32 v{reg}, v32, 8, v34')
        a(f's_lshl_b32 s{sRINGB}, s{sV}, 14')
        a(f's_setprio {P[0]}')
        self.kl(KF, cfg['NQ'], cfg['TD'])
        self.lds_arrive(6)
        self.kl(cfg['NQ'], 32, cfg['TD'])
        self.stamp(2)
        a(f's_setprio {P[1]}')
        self.vl(0, cfg['TDV'])
        self.vl(1, cfg['TDV'])
        a(f's_setprio {P[2]}')
        self.stamp(3)
        a(f's_lshl_b32 s{sV64}, s{sV}, 6')
        a(f's_mov_b32 s{sSEL}, 0x00ff00ff')
        a(f's_mov_b32 s{sSEL+1}, 0xff00ff00')
        a(f's_mul_i32 s{sOWN}, s2, {PAS}')
        a(f's_add_u32 s{sOWN}, s{sOWN}, {W_PA}')
        a(f's_lshl_b32 s{sPAO}, s{sV}, 9')
        a(f's_add_u32 s{sPAO}, s{sPAO}, s{sOWN}')
        a(f's_cmp_lg_u32 s{sISX}, 0')
        a('s_cbranch_scc1 L_base_x')
        a(f's_lshr_b32 s{sT0}, s{sJ}, 3')
        a(f's_lshl_b32 s{sT0}, s{sT0}, 3')
        a(f's_add_u32 s{sTEAM}, s{sT0}, s{sX}')
        a(f's_lshl_b32 s{sT0}, s{sRG}, 7')
        a(f's_lshl_b32 s{sT1}, s{sV}, 4')
        a(f's_add_u32 s{sT0}, s{sT0}, s{sT1}')
        a(f's_lshl_b32 s{sXO}, s{sT0}, 1')
        a(f's_mul_i32 s{sT0}, s{sT0}, 7168')
        a(f's_lshl_b32 s{sT1}, s{sTEAM}, 9')
        a(f's_add_u32 s{sW1B}, s{sT0}, s{sT1}')
        a(f's_mov_b32 s{sW1S}, {4*7168}')
        a(f's_lshl_b32 s{sT0}, s{sTEAM}, 19')
        a(f's_lshl_b32 s{sT1}, s{sV}, 16')
        a(f's_add_u32 s{sT0}, s{sT0}, s{sT1}')
        a(f's_lshl_b32 s{sT1}, s{sRG}, 8')
        a(f's_add_u32 s{sDNB}, s{sT0}, s{sT1}')
        a(f's_lshl_b32 s{sT0}, s{sTEAM}, 14')
        a(f's_add_u32 s{sTB}, s{sT0}, {W_PC}')
        a(f's_lshl_b32 s{sT1}, s{sRG}, 11')
        a(f's_add_u32 s{sDST}, s{sTB}, s{sT1}')
        a(f's_lshl_b32 s{sT0}, s{sRG}, 13')
        a(f's_add_u32 s{sGA}, s{sT0}, {W_PD}')
        a(f's_lshl_b32 s{sT1}, s{sTEAM}, 9')
        a(f's_add_u32 s{sDST2}, s{sGA}, s{sT1}')
        a(f's_mov_b32 s{sH}, 7168')
        a('s_branch L_base_j')
        a('L_base_x:')
        a(f's_mov_b32 s{sTEAM}, 0')
        a(f's_lshr_b32 s{sT0}, s{sX}, 2')
        a(f's_lshl_b32 s{sT0}, s{sT0}, 2')
        a(f's_lshr_b32 s{sT1}, s{sJ}, 2')
        a(f's_add_u32 s{sT0}, s{sT0}, s{sT1}')
        a(f's_lshl_b32 s{sT1}, s{sT0}, 9')
        a(f's_add_u32 s{sT1}, s{sT1}, s{sV64}')
        a(f's_mul_i32 s{sT2}, s{sKVH}, {PAS}')
        a(f's_add_u32 s{sT1}, s{sT1}, s{sT2}')
        a(f's_add_u32 s{sGA}, s{sT1}, {W_PA}')
        a(f's_lshl_b32 s{sT1}, s{sKVH}, 3')
        a(f's_add_u32 s{sT0}, s{sT0}, s{sT1}')
        a(f's_and_b32 s{sT2}, s{sJ}, 3')
        a(f's_lshl_b32 s{sT1}, s{sT0}, 9')
        a(f's_lshl_b32 s{sDST}, s{sT2}, 15')
        a(f's_add_u32 s{sDST}, s{sDST}, s{sT1}')
        a(f's_add_u32 s{sDST}, s{sDST}, {W_PB}')
        a(f's_lshl_b32 s{sT0}, s{sT0}, 18')
        a(f's_lshl_b32 s{sT1}, s{sV}, 15')
        a(f's_add_u32 s{sT0}, s{sT0}, s{sT1}')
        a(f's_lshl_b32 s{sT2}, s{sT2}, 9')
        a(f's_add_u32 s{sW1B}, s{sT0}, s{sT2}')
        a(f's_mov_b32 s{sW1S}, {4*2048}')
        a(f's_lshl_b32 s{sT0}, s{sX}, 8')
        a(f's_lshl_b32 s{sT1}, s{sV}, 5')
        a(f's_add_u32 s{sXO}, s{sT0}, s{sT1}')
        a(f's_lshl_b32 s{sT0}, s{sX}, 14')
        a(f's_add_u32 s{sT0}, s{sT0}, s{sV64}')
        a(f's_add_u32 s{sTB}, s{sT0}, {W_PB}')
        a(f's_mul_i32 s{sT0}, s{sX}, 768')
        a(f's_add_u32 s{sDST2}, s{sT0}, {W_XS}')
        a(f's_mov_b32 s{sDNB}, 0')
        a(f's_mov_b32 s{sH}, 2048')
        a('L_base_j:')
        a(f'v_and_b32 v24, 7, v{vL}')
        a(f'v_mul_u32_u24 v24, {QSTR}, v24')
        a(f'v_lshl_add_u32 v24, v32, 4, v24')
        a(f'v_add_u32 v24, {L_QB}, v24')
        a(f'v_bfe_u32 v26, v{vL}, 3, 1')
        a(f'v_lshl_add_u32 v25, v26, 6, v24')
        a(f'v_xor_b32 v26, 1, v26')
        a(f'v_lshl_add_u32 v24, v26, 6, v24')
        self.lds_wait(3, 4, sleep=2)
        self.stamp(4)
        for ty, reg in ((0, 25), (1, 24)):
            for hf in range(2):
                b = vBQ + 8 * ty + 4 * hf
                a(f'ds_read_b128 v[{b}:{b+3}], v{reg} offset:{128*hf}')
        a('s_waitcnt lgkmcnt(0)')
        for t in range(4):
            self.vm_wait(f'K{t}')
            for hf in range(2):
                for u in range(4):
                    kr = vK + 32 * t + 8 * u + 4 * hf
                    b = vBQ + 8 * (u & 1) + 4 * hf
                    d = (vD1 if t & 1 else vD0) + 4 * u
                    c = '0' if hf == 0 else f'v[{d}:{d+3}]'
                    a(f'v_mfma_f32_16x16x32_bf16 v[{d}:{d+3}], v[{kr}:{kr+3}], v[{b}:{b+3}], {c}')
            if t > 0: self.sfix(t - 1)
        self.sfix(3)
        S = list(range(vS, vS + 16))
        a(f'v_max3_f32 v88, v{S[0]}, v{S[1]}, v{S[2]}')
        for k in range(3, 15, 2): a(f'v_max3_f32 v88, v88, v{S[k]}, v{S[k+1]}')
        a(f'v_max_f32 v88, v88, v{S[15]}')
        self.allred('v_max_f32', [88], (3, 4, 5), [89])
        for r in S: a(f'v_sub_f32 v{r}, v{r}, v88')
        for r in S: a(f'v_mul_f32 v{r}, {LOG2E}, v{r}')
        for r in S: a(f'v_exp_f32 v{r}, v{r}')
        a(f'v_add_f32 v89, v{S[0]}, v{S[1]}')
        for r in S[2:]: a(f'v_add_f32 v89, v89, v{r}')
        self.allred('v_add_f32', [89], (3, 4, 5), [90])
        a(f'v_lshlrev_b32 v{vRED}, 3, v{vL}')
        a(f's_add_u32 s{sT0}, s{sV64}, {L_ML}')
        a(f'v_add_u32 v90, s{sT0}, v{vRED}')
        a('s_mov_b64 exec, 0xff')
        a('ds_write_b64 v90, v[88:89]')
        a('s_waitcnt lgkmcnt(0)')
        a('s_mov_b64 exec, 1')
        a(f'ds_add_rtn_u32 v91, v{vCNT}, v{vONE} offset:16')
        a('s_mov_b64 exec, -1')
        for t in range(4):
            a(f'v_cvt_pk_bf16_f32 v{vP+4*t}, v{vS+4*t}, v{vS+4*t+1}')
            a(f'v_cvt_pk_bf16_f32 v{vP+4*t+1}, v{vS+4*t+2}, v{vS+4*t+3}')
        for t in range(4):
            a(f'v_mov_b32_dpp v{vP+4*t+2}, v{vP+4*t} row_ror:8 {DPP}')
            a(f'v_mov_b32_dpp v{vP+4*t+3}, v{vP+4*t+1} row_ror:8 {DPP}')
        a(f'v_lshrrev_b32 v100, 4, v{vL}')
        a(f'v_and_b32 v101, 15, v{vL}')
        a(f'v_and_b32 v102, 3, v{vL}')
        a(f'v_lshrrev_b32 v103, 2, v{vL}')
        a(f'v_and_b32 v104, 3, v103')
        a(f'v_and_b32 v105, 1, v100')
        a(f'v_lshl_add_u32 v104, v105, 2, v104')
        a(f'v_lshrrev_b32 v105, 1, v100')
        a(f'v_lshl_add_u32 v105, v105, 4, v104')
        a(f'v_lshlrev_b32 v105, 8, v105')
        a(f'v_lshl_add_u32 v105, v102, 3, v105')
        a(f'v_add_u32 v105, s{sRINGB}, v105')
        for d in range(8):
            a(f'v_xor_b32 v106, {d}, v104')
            a(f'v_lshl_add_u32 v{vTR+d}, v106, 5, v105')
        a(f'v_lshlrev_b32 v106, 4, v101')
        a(f'v_lshl_add_u32 v{vW2D}, v100, 11, v106')
        a(f'v_mad_u32_u24 v{vW1}, v100, s{sH}, v106')
        a(f's_cmp_ge_u32 s{sTEAM}, 14')
        a(f's_cselect_b32 s{sT1}, {OOB}, 0')
        a(f'v_or_b32 v{vW1}, s{sT1}, v{vW1}')
        a(f's_cmp_eq_u32 s{sISX}, 0')
        a(f's_cselect_b32 s{sT1}, {OOB}, 0')
        a(f'v_or_b32 v{vW1X}, s{sT1}, v{vW1}')
        a(f'v_lshl_add_u32 v{vC4G}, v102, 2, v100')
        a(f'v_lshlrev_b32 v{vC4G}, 1, v{vC4G}')
        a('s_waitcnt lgkmcnt(0)')
        a(f'v_readfirstlane_b32 s{sT0}, v91')
        a(f's_cmp_lg_u32 s{sT0}, 7')
        a('s_cbranch_scc1 L_notlast')
        a(f'v_add_u32 v90, {L_ML}, v{vRED}')
        a('ds_read_b64 v[92:93], v90')
        a(f'v_lshrrev_b32 v96, 3, v{vL}')
        a(f'v_and_b32 v97, 7, v{vL}')
        a(f'v_lshlrev_b32 v97, 5, v97')
        a(f'v_lshl_add_u32 v96, v96, 2, v97')
        a(f'v_add_u32 v96, {L_F}, v96')
        a('s_waitcnt lgkmcnt(0)')
        a('v_mov_b32 v94, v92')
        self.allred('v_max_f32', [94], (3, 4, 5), [95])
        a('v_sub_f32 v92, v92, v94')
        a(f'v_mul_f32 v92, {LOG2E}, v92')
        a('v_exp_f32 v92, v92')
        a('v_mul_f32 v95, v93, v92')
        a('ds_write_b32 v96, v92')
        self.allred('v_add_f32', [95], (3, 4, 5), [93])
        a('v_min_u32 v94, -2, v94')
        a('v_min_u32 v95, -2, v95')
        a(f's_add_u32 s{sT0}, s{sOWN}, 4096')
        a('s_mov_b64 exec, 0xff')
        a('s_setprio 3')
        a(f'buffer_store_dwordx2 v[94:95], v{vRED}, {sr(SWS)}, s{sT0} offen sc1')
        a(f's_setprio {P[2]}')
        a('s_mov_b64 exec, -1')
        a('s_waitcnt lgkmcnt(0)')
        a('L_notlast:')
        self.stamp(6)
        aOWR, aORD0, aORD1, aF, aMOD, aW = 72, 73, 74, 75, 76, 77
        for t in range(4):
            self.vm_wait(f'V{t}')
            so = (t % 2) * 8192
            def rd(d):
                f = vVF + 4 * (d % 4)
                a(f'ds_read_b64_tr_b16 v[{f}:{f+1}], v{vTR+d} offset:{so}')
                a(f'ds_read_b64_tr_b16 v[{f+2}:{f+3}], v{vTR+d} offset:{so+2048}')
            for d in range(4): rd(d)
            for d in range(8):
                f = vVF + 4 * (d % 4)
                a(f's_waitcnt lgkmcnt({6 if d < 5 else 2*(7-d)})')
                c = '0' if t == 0 else f'v[{vO+4*d}:{vO+4*d+3}]'
                a(f'v_mfma_f32_16x16x32_bf16 v[{vO+4*d}:{vO+4*d+3}], v[{f}:{f+3}], v[{vP+4*t}:{vP+4*t+3}], {c}')
                if d < 4: rd(d + 4)
            if t == 0:
                self.vm('xf', f'buffer_load_ushort v{vXF}, v{vC4G}, {sr(SX)}, s{sXO} offen')
                self.w1(cfg['W']['preV2'], vW1X)
                self.vl(2)
            if t == 1:
                self.w1(cfg['W']['preV3'], vW1X)
                self.vl(3)
                self.lds_arrive(7)
                a(f's_setprio {P[3]}')
                self.w1(8, vW1X)
                a('s_setprio 3')
                self.stamp(7)
            if t == 2:
                a(f'v_lshrrev_b32 v78, 4, v{vL}')
                a(f'v_and_b32 v79, 15, v{vL}')
                self.gemv_consts(78, 79, None, 72)
                a(f'v_mul_u32_u24 v{aOWR}, {OSTR}, v79')
                a(f'v_lshl_add_u32 v{aOWR}, v78, 4, v{aOWR}')
                a(f'v_add_u32 v{aOWR}, s{sRINGB}, v{aOWR}')
                a(f's_mul_i32 s{sT0}, s{sV}, {OSTR}')
                a(f'v_add_u32 v{aORD0}, s{sT0}, v{vRED}')
                a(f'v_add_u32 v{aORD1}, {4*RING}, v{aORD0}')
                a(f's_lshl_b32 s{sT0}, s{sV}, 5')
                a(f's_add_u32 s{sT0}, s{sT0}, {L_F}')
                a(f'v_mov_b32 v{aF}, s{sT0}')
                a(f'v_and_b32 v38, 3, v{vL}')
                a(f'v_lshlrev_b32 v38, 4, v38')
                a(f'v_lshrrev_b32 v39, 2, v{vL}')
                a(f's_mov_b32 s{sT0}, {4*PAS}')
                a(f'v_mad_u32_u24 v{vGA4}, v39, s{sT0}, v38')
                a(f'v_lshl_add_u32 v{vG512}, v39, 9, v38')
                a(f'v_lshrrev_b32 v78, 3, v{vL}')
                a(f'v_and_b32 v79, 7, v{vL}')
                a(f'v_lshlrev_b32 v79, 3, v79')
                a(f's_movk_i32 s{sT0}, 768')
                a(f'v_mad_u32_u24 v{vSTG}, v78, s{sT0}, v79')
                a(f'v_and_b32 v79, 1, v39')
                a(f'v_lshl_add_u32 v79, v79, 10, v38')
                a(f'v_lshl_add_u32 v{vCG}, v78, 11, v79')
                a(f'v_lshlrev_b32 v{vXF}, 16, v{vXF}')
                a(f's_add_u32 s{sT0}, s{sV64}, {L_MOD}')
                a(f'v_lshl_add_u32 v{aMOD}, v{vC4G}, 1, s{sT0}')
                a(f'v_lshlrev_b32 v{aW}, 2, v{vL}')
                a(f'v_add_u32 v{aW}, {L_W}, v{aW}')
        self.stamp(8)
        a('s_mov_b32 exec_lo, 0x00ff00ff')
        a('s_mov_b32 exec_hi, 0x00ff00ff')
        for d in range(8):
            a(f'ds_write_b128 v{aOWR}, v[{vO+4*d}:{vO+4*d+3}] offset:{64*d}')
        a('s_mov_b64 exec, -1')
        self.wnext = 0
        xq = list(self.vmq)
        if cfg['W']['preBar']:
            a(f's_cmp_lg_u32 s{sISX}, 0')
            a('s_cbranch_scc1 L_nopre')
            a(f's_setprio {P[3]}')
            self.w1(cfg['W']['preBar'])
            a('s_setprio 3')
            a('L_nopre:')
        a('s_waitcnt lgkmcnt(0)')
        a('s_barrier')
        a(f'ds_read_b128 v[104:107], v{aF}')
        a(f'ds_read_b128 v[108:111], v{aF} offset:16')
        for k in range(4):
            bs = aORD0 if k < 2 else aORD1
            kk = k % 2
            a(f'ds_read2st64_b64 v[{88+4*k}:{91+4*k}], v{bs} offset0:{64*kk} offset1:{64*kk+32}')
        a(f'ds_read_b32 v{vWW}, v{aW}')
        for k, r in enumerate((vM0, vM1, vM2)):
            a(f'ds_read_b32 v{r}, v{aMOD} offset:{512*(k+1)}')
        def pk(op, dst, j):
            fp = 104 + (j & ~1); x = 88 + 2 * j
            if op == 'mul':
                sel = 'op_sel:[0,1] op_sel_hi:[1,1]' if j & 1 else 'op_sel:[0,0] op_sel_hi:[1,0]'
                a(f'v_pk_mul_f32 v[{dst}:{dst+1}], v[{x}:{x+1}], v[{fp}:{fp+1}] {sel}')
            else:
                sel = 'op_sel:[0,1,0] op_sel_hi:[1,1,1]' if j & 1 else 'op_sel:[0,0,0] op_sel_hi:[1,0,1]'
                a(f'v_pk_fma_f32 v[{dst}:{dst+1}], v[{x}:{x+1}], v[{fp}:{fp+1}], v[{dst}:{dst+1}] {sel}')
        a('s_waitcnt lgkmcnt(6)')
        pk('mul', 80, 0); pk('mul', 82, 1); pk('fma', 80, 2); pk('fma', 82, 3)
        a('s_waitcnt lgkmcnt(4)')
        pk('fma', 80, 4); pk('fma', 82, 5); pk('fma', 80, 6); pk('fma', 82, 7)
        a('v_pk_add_f32 v[80:81], v[80:81], v[82:83]')
        a('v_min_u32 v80, -2, v80')
        a('v_min_u32 v81, -2, v81')
        self.vm('st', f'buffer_store_dwordx2 v[80:81], v{vRED}, {sr(SWS)}, s{sPAO} offen sc1')
        self.stamp(9)
        a('s_setprio 0')
        a('s_waitcnt lgkmcnt(0)')
        a(f's_cmp_eq_u32 s{sISX}, 0')
        a('s_cbranch_scc1 L_tail_y')
        save = list(self.vmq)
        self.vmq = xq + ['st']
        G, AF, AC, M = 88, 104, 120, 128
        loads = []
        for n in range(4):
            if n: loads.append(f's_add_u32 s{sT1}, s{sGA}, {64*n*PAS}')
            loads.append(f'buffer_load_dwordx4 v[{G+4*n}:{G+3+4*n}], v{vGA4}, {sr(SWS)}, s{sT1 if n else sGA} offen sc1')
        self.delay('A')
        self.issue('A', loads)
        self.validate('A', loads, range(G, G + 16), sleep=cfg['SLA'], rec=0)
        self.stamp(10)
        for k in range(4): a(f'v_mul_f32_dpp v{G+k}, v{vWW}, v{G+k} quad_perm:[0,0,0,0] {DPP}')
        for n in range(1, 4):
            for k in range(4): a(f'v_fmac_f32_dpp v{G+k}, v{vWW}, v{G+4*n+k} quad_perm:[{n},{n},{n},{n}] {DPP}')
        self.tred(G, M)
        a(f'v_cvt_pk_bf16_f32 v{M}, v{M}, v{M}')
        self.gemv(M, [(40, AC), (56, AC + 4)], AF, wait='w1')
        self.out_write([AC, AC + 4], L_WO)
        a('s_barrier')
        self.red_pub(0, 2, L_WO, sDST, 16384, 8, AF)
        a(f's_cmp_lg_u32 s{sJ}, 15')
        a('s_cbranch_scc1 L_fin')
        a(f's_add_u32 s{sT1}, s{sTB}, 8192')
        loads = [f'buffer_load_dwordx4 v[{G}:{G+3}], v{vG512}, {sr(SWS)}, s{sTB} offen sc1',
                 f'buffer_load_dwordx4 v[{G+4}:{G+7}], v{vG512}, {sr(SWS)}, s{sT1} offen sc1']
        self.delay('B')
        self.issue('B', loads)
        a(f'v_subrev_u32 v{aMOD}, {L_MOD - L_XS}, v{aMOD}')
        a(f's_lshl_b32 s{sT0}, s{sV}, 3')
        a(f's_add_u32 s{sT0}, s{sT0}, {L_XS + 512}')
        a(f'v_mov_b32 v{aW}, s{sT0}')
        a(f's_lshl_b32 s{sT0}, s{sV}, 9')
        a(f's_add_u32 s{sDST2}, s{sDST2}, s{sT0}')
        a(f's_add_u32 s{sT0}, s{sT0}, {L_XS}')
        a(f'v_add_u32 v{aF}, s{sT0}, v{vRED}')
        self.validate('B', loads, range(G, G + 8), sleep=cfg['SL'], rec=1)
        self.stamp(11)
        for k in range(4): a(f'v_add_f32 v{G+k}, v{G+k}, v{G+4+k}')
        self.tred(G, M)
        self.rnd(M, M)
        a(f'v_mul_f32 v{M}, v{M}, v{vM0}')
        self.rnd(M, M)
        a(f'v_add_f32 v{M}, v{M}, v{vXF}')
        self.rnd(vX2, M)
        a(f'ds_write_b32 v{aMOD}, v{vX2}')
        a(f'v_readfirstlane_b32 s{sT0}, v{vX2}')
        a(f'v_subrev_f32 v{M+1}, s{sT0}, v{vX2}')
        a(f'v_mul_f32 v{M+2}, v{M+1}, v{M+1}')
        self.allred('v_add_f32', [M + 1, M + 2], (0, 1, 4, 5), [M + 3, M + 4])
        a(f'v_mul_f32 v{M+3}, 0x3d800000, v{M+1}')
        a(f'v_fma_f32 v{M+5}, -v{M+1}, v{M+3}, v{M+2}')
        a(f'v_add_f32 v{M+4}, s{sT0}, v{M+3}')
        a(f'v_min_u32 v{M+4}, -2, v{M+4}')
        a(f'v_min_u32 v{M+5}, -2, v{M+5}')
        a(f'ds_write_b64 v{aW}, v[{M+4}:{M+5}]')
        a('s_waitcnt lgkmcnt(0)')
        a('s_barrier')
        a(f's_cmp_ge_u32 s{sV}, 2')
        a('s_cbranch_scc1 L_fin')
        a(f's_cmp_eq_u32 s{sV}, 0')
        a(f's_cselect_b32 exec_lo, -1, 0xff')
        a(f's_cselect_b32 exec_hi, -1, 0')
        a(f'ds_read_b64 v[{M+4}:{M+5}], v{aF}')
        a('s_waitcnt lgkmcnt(0)')
        a(f'buffer_store_dwordx2 v[{M+4}:{M+5}], v{vRED}, {sr(SWS)}, s{sDST2} offen sc1')
        a('s_mov_b64 exec, -1')
        self.stamp(12)
        a('s_branch L_fin')
        a('L_tail_y:')
        self.vmq = save
        a(f's_cmp_ge_u32 s{sTEAM}, 14')
        a('s_cbranch_scc1 L_fin')
        G, AF, AC, M = 12, 88, 72, 72
        vWD = 104
        self.w1(8)
        for k in range(4):
            if k == 0: a(f's_mov_b32 s{sT3}, s{sW1B}')
            else: a(f's_add_u32 s{sT3}, s{sW1B}, {4*k*7168}')
            for b in range(2):
                r = 136 + 16 * b + 4 * k
                self.vm('w1', f'buffer_load_dwordx4 v[{r}:{r+3}], v{vW1}, {sr(SU)}, s{sT3} offen offset:{256*b} nt')
        def dn(k0, k1):
            for k in range(k0, k1):
                a(f's_add_u32 s{sT3}, s{sDNB}, {4*k*2048}')
                self.vm('dn', f'buffer_load_dwordx4 v[{vWD+4*k}:{vWD+4*k+3}], v{vW2D}, {sr(SD)}, s{sT3} offen nt')
        dn(0, cfg['W']['dn0'])
        a(f's_mul_i32 s{sT1}, s{sRG}, 768')
        a(f's_add_u32 s{sT1}, s{sT1}, s{sV64}')
        a(f's_add_u32 s{sT1}, s{sT1}, {W_XS}')
        a(f's_mov_b32 s{sT0}, {W_XS + 512}')
        a(f'v_lshlrev_b32 v38, 1, v{vC4G}')
        loads = [f'buffer_load_dwordx2 v[{G}:{G+1}], v{vSTG}, {sr(SWS)}, s{sT0} offen sc1',
                 f'buffer_load_dword v{vX2}, v38, {sr(SWS)}, s{sT1} offen sc1']
        if cfg['YW']: self.vm_wait('w1')
        self.delay('S')
        self.issue('S', loads)
        dn(cfg['W']['dn0'], 8)
        self.stamp(10)
        self.validate('S', loads, (G, G + 1, vX2), sleep=cfg['SLS'], rec=2)
        self.stamp(12)
        a(f'v_readfirstlane_b32 s{sT0}, v{G}')
        a(f'v_subrev_f32 v{G+2}, s{sT0}, v{G}')
        a(f'v_mul_f32 v{G+3}, 0x41800000, v{G+2}')
        a(f'v_fmac_f32 v{G+1}, v{G+3}, v{G+2}')
        self.allred('v_add_f32', [G + 2, G + 1], (0, 1, 3, 2, 4, 5), [G + 4, G + 5])
        a(f'v_mul_f32 v{G+2}, 0x3c800000, v{G+2}')
        a(f'v_mul_f32 v{G+1}, 0x3a800000, v{G+1}')
        a(f'v_fma_f32 v{G+1}, -v{G+2}, v{G+2}, v{G+1}')
        a(f'v_add_f32 v{G+2}, s{sT0}, v{G+2}')
        self.ln_stats(G + 2, G + 1)
        self.ln_apply(G + 4, vX2, G + 2, G + 1, vM1, vM0, G + 3)
        self.gemv(G + 4, [(40, AC), (56, AC + 4), (136, AC + 8), (152, AC + 12)], AF, wait='w1')
        self.out_write([AC, AC + 4, AC + 8, AC + 12], L_GU)
        a('s_barrier')
        self.red_pub(0, 4, L_GU, sDST, 512, 8, AF)
        a(f's_lshl_b32 s{sT0}, s{sV}, 7')
        a(f's_add_u32 s{sT0}, s{sT0}, s{sTB}')
        loads = [f'buffer_load_dwordx4 v[{G+4*hh}:{G+4*hh+3}], v{vCG}, {sr(SWS)}, s{sT0} offen offset:{64*hh} sc1' for hh in range(2)]
        self.delay('C')
        self.issue('C', loads)
        a(f's_mov_b32 s{sSEL}, 0xf0f0f0f0')
        a(f's_mov_b32 s{sSEL+1}, 0xf0f0f0f0')
        self.validate('C', loads, range(G, G + 8), sleep=cfg['SL'], rec=3)
        self.stamp(13)
        self.tred(G, M, bits=(3,))
        self.tred(G + 4, M + 1, bits=(3,))
        self.rnd(M, M); self.rnd(M + 1, M + 1)
        a(f'v_mov_b32_dpp v{M+2}, v{M} row_ror:4 {DPP}')
        a(f'v_mov_b32_dpp v{M+3}, v{M+1} row_ror:4 {DPP}')
        a(f'v_cndmask_b32 v{M+4}, v{M}, v{M+3}, s[{sSEL}:{sSEL+1}]')
        a(f'v_cndmask_b32 v{M+5}, v{M+2}, v{M+1}, s[{sSEL}:{sSEL+1}]')
        self.silu(M + 4, M + 4, M + 6)
        self.rnd(M + 4, M + 4)
        a(f'v_mul_f32 v{M+4}, v{M+4}, v{M+5}')
        a(f'v_cvt_pk_bf16_f32 v{M+4}, v{M+4}, v{M+4}')
        a(f'v_mov_b32_dpp v{M+5}, v{M+4} row_ror:4 {DPP}')
        a(f'v_cndmask_b32 v{G}, v{M+4}, v{M+5}, s[{sSEL}:{sSEL+1}]')
        a(f'v_cndmask_b32 v{G+1}, v{M+5}, v{M+4}, s[{sSEL}:{sSEL+1}]')
        for n in range(4): self.afrag(AF + 4 * n, G, n)
        for n in range(4): self.afrag(40 + 4 * n, G + 1, n)
        self.vm_wait('dn')
        for n in range(4):
            self.mf(AC + 12, AF, vWD, n, n == 0)
            self.mf(56, 40, vWD + 16, n, n == 0)
        for k in range(4): a(f'v_add_f32 v{56+k}, v{56+k}, v{AC+12+k}')
        self.out_write([56], L_DN)
        a('s_barrier')
        self.red_pub(0, 1, L_DN, sDST2, 0, 8, AF)
        a(f's_cmp_lg_u32 s{sTEAM}, s{sRG}')
        a('s_cbranch_scc1 L_fin')
        a(f's_add_u32 s{sT0}, s{sGA}, s{sV64}')
        a(f'v_cmp_lt_u32 vcc, 55, v{vL}')
        a(f'v_mov_b32 v38, {OOB}')
        a(f'v_cndmask_b32 v38, v{vG512}, v38, vcc')
        loads = [f'buffer_load_dwordx4 v[{G}:{G+3}], v38, {sr(SWS)}, s{sT0} offen sc1']
        self.delay('D')
        self.issue('D', loads)
        self.validate('D', loads, range(G, G + 4), sleep=cfg['SL'], rec=4)
        self.stamp(14)
        self.tred(G, M)
        self.rnd(M, M)
        a(f'v_mul_f32 v{M}, v{M}, v{vM2}')
        self.rnd(M, M)
        a(f'v_add_f32 v{M}, v{M}, v{vX2}')
        a(f'v_cvt_pk_bf16_f32 v{M}, v{M}, v{M}')
        a('s_mov_b32 exec_lo, 0x000f000f')
        a('s_mov_b32 exec_hi, 0x000f000f')
        a(f'buffer_store_short v{M}, v{vC4G}, {sr(SO)}, s{sXO} offen')
        a('s_mov_b64 exec, -1')
        a('L_fin:')
        self.finish()


if __name__ == '__main__':
    out = sys.argv[1]
    stamps = sys.argv[2] if len(sys.argv) > 2 and sys.argv[2] != '-' else False
    cfg = json.loads(sys.argv[3]) if len(sys.argv) > 3 else None
    open(out, 'w').write(Gen(stamps=stamps, cfg=cfg).build())
```
